```python
import torch

def _softmax(x, axis=-1):
    return torch.softmax(x, dim=axis)

def _gelu(x):
    return torch.nn.functional.gelu(x, approximate='tanh')

def _silu(x):
    return torch.nn.functional.silu(x)

def _sigmoid(x):
    return torch.sigmoid(x)

def _layernorm(x, axis=-1, eps=1e-05):
    m = x.mean(dim=axis, keepdim=True)
    v = x.var(dim=axis, keepdim=True, unbiased=False)
    return (x - m) / torch.sqrt(v + eps)

def _scatter_add(tgt, idx, src, axis=0):
    return tgt.clone().index_add_(axis, idx, src)

def _segment_sum(src, seg, n):
    out = torch.zeros((n,) + src.shape[1:], dtype=src.dtype)
    return out.index_add_(0, seg, src)

def _pad(x, pw):
    flat = tuple((v for pair in reversed(pw) for v in pair))
    return torch.nn.functional.pad(x, flat)
kernel_name = 'parallel_sum__softmax_full_mha__mixer_gmlp__prompt'

def setup_inputs():

    _w = lambda a: (lambda t: t.to(torch.bfloat16) if t.is_floating_point() else t)(torch.as_tensor(a))

    def _A_setup():
        B, S, D = (1, 2048, 512)
        return {'x': _w((lambda *s: torch.randn(*s, dtype=torch.bfloat16) * 0.05)(B, S, D)), 'wqkv': _w((lambda *s: torch.randn(*s, dtype=torch.bfloat16) * 0.2)(D, 3 * D)), 'wo': _w((lambda *s: torch.randn(*s, dtype=torch.bfloat16) * 0.2)(D, D))}
    _A_in = _A_setup()

    def _B_setup():
        B, S, D, F = (1, 2048, 512, 1792)
        Fh = F // 2
        return {'x': _w((lambda *s: torch.randn(*s, dtype=torch.bfloat16) * 0.05)(B, S, D)), 'w_in': _w((lambda *s: torch.randn(*s, dtype=torch.bfloat16) * 0.8)(D, 2 * Fh)), 'w_sp': _w(0.01 * (lambda *s: torch.randn(*s, dtype=torch.bfloat16) * 0.8)(S, S)), 'b_sp': _w(1.0 + 0.01 * (lambda *s: torch.randn(*s, dtype=torch.bfloat16) * 0.2)(S)), 'w_out': _w((lambda *s: torch.randn(*s, dtype=torch.bfloat16) * 0.2)(Fh, D))}
    _B_in = _B_setup()
    return {'A_x': _A_in['x'], 'A_wqkv': _A_in['wqkv'], 'A_wo': _A_in['wo'], 'B_x': _B_in['x'], 'B_w_in': _B_in['w_in'], 'B_w_sp': _B_in['w_sp'], 'B_b_sp': _B_in['b_sp'], 'B_w_out': _B_in['w_out']}

def reference(A_x, A_wqkv, A_wo, B_x, B_w_in, B_w_sp, B_b_sp, B_w_out):

    def _A_ref(x, wqkv, wo):
        B, S, D = x.shape
        H = 32
        Dh = D // H
        qkv = (lambda x, *d: x.permute(*d))((x @ wqkv).reshape(B, S, 3, H, Dh), 2, 0, 3, 1, 4)
        q, k, v = (qkv[0], qkv[1], qkv[2])
        scale = Dh ** (-0.5)
        scores = torch.einsum('bhqd,bhkd->bhqk', q, k) * scale
        p = _softmax(scores, axis=-1)
        o = torch.einsum('bhqk,bhkd->bhqd', p, v)
        return (lambda x, *d: x.permute(*d))(o, 0, 2, 1, 3).reshape(B, S, D) @ wo

    def _B_ref(x, w_in, w_sp, b_sp, w_out):
        B, S, D = x.shape
        F = w_in.shape[-1]
        Fh = F // 2
        z = _gelu(torch.einsum('bsd,df->bsf', x, w_in))
        z1 = z[..., :Fh].clone()
        z2 = _layernorm(z[..., Fh:], axis=-1)
        g = torch.einsum('ts,bsf->btf', w_sp, z2) + b_sp[None, :, None]
        return torch.einsum('bsf,fd->bsd', z1 * g, w_out)
    x = A_x
    xn = _layernorm(x, axis=-1)
    return x + _A_ref(xn, A_wqkv, A_wo) + _B_ref(xn, B_w_in, B_w_sp, B_b_sp, B_w_out)
```

```python
import struct


def f2u(x):
    return struct.unpack('<I', struct.pack('<f', x))[0]


def vr(a, n=1):
    return f"v{a}" if n == 1 else f"v[{a}:{a+n-1}]"


def ar(a, n=1):
    return f"a{a}" if n == 1 else f"a[{a}:{a+n-1}]"


def sr(a, n=1):
    return f"s{a}" if n == 1 else f"s[{a}:{a+n-1}]"


class Asm:
    def __init__(self):
        self.l = []
        self.uid = 0

    def __call__(self, s):
        for line in s.strip('\n').split('\n'):
            self.l.append('  ' + line.strip())

    def label(self, name):
        self.l.append(name + ':')

    def newlabel(self, base):
        self.uid += 1
        return f"L_{base}_{self.uid}"

    def c(self, s):
        self.l.append('  ; ' + s)

    def nop(self, n):
        while n > 0:
            k = min(n, 16)
            self.l.append(f"  s_nop {k-1}")
            n -= k

    def text(self):
        return '\n'.join(self.l) + '\n'

    def kernel_begin(self, name):
        self.l.append('.text')
        self.l.append(f'.globl {name}')
        self.l.append('.p2align 8')
        self.l.append(f'.type {name},@function')
        self.l.append(f'{name}:')

    def kernel_end(self, name, nvgpr, nsgpr=102, accum=None):
        accum = accum if accum is not None else (nvgpr + 3) // 4 * 4
        self.l.append(f'''.section .rodata,"a"
.p2align 6
.amdhsa_kernel {name}
  .amdhsa_next_free_vgpr {nvgpr}
  .amdhsa_next_free_sgpr {nsgpr}
  .amdhsa_accum_offset {accum}
  .amdhsa_group_segment_fixed_size 0
  .amdhsa_kernarg_size 88
  .amdhsa_user_sgpr_count 2
  .amdhsa_user_sgpr_kernarg_segment_ptr 1
  .amdhsa_system_sgpr_workgroup_id_x 1
.end_amdhsa_kernel''')

    def srd(self, d, base, nbytes):
        self(f"s_mov_b32 s{d}, s{base}")
        self(f"s_and_b32 s{d+1}, s{base+1}, 0xffff")
        self(f"s_mov_b32 s{d+2}, {nbytes:#x}")
        self(f"s_mov_b32 s{d+3}, 0x20000")
```

```python
from asmlib import *

QF = 0x000000
KF = 0x200000
VF = 0x400000
Z1F = 0x600000
Z2F = 0xA00000
Z2N = 0xE00000
AF = 0x1200000
ST = 0x1800000
WF = 0x1900000
WS_SIZE = 0x1B00000

QSCALE = 0.25 * 1.4426950408889634
GC1 = -2.0 * 1.4426950408889634 * 0.7978845608028654
GC2 = GC1 * 0.044715


def gen_k1(a, name='k1_kernel'):
    a.kernel_begin(name)
    L_end = 'L_k1_end'
    sX, sW, sWS = 12, 16, 20
    sWave, sCb, sRb, sWq, sWm, sRS, sCur, sRS32, sRS4, sLdsW, sT, sAct = 24, 25, 26, 27, 28, 29, 30, 31, 32, 33, 34, 35
    sOnes, sMask, sT2, sTT, sBase = 36, 37, 38, 39, 40
    vLane, vT1, vT2, vT3 = 1, 2, 3, 4
    vXoff, vWoff, vLdsWr, vAE, vAO = 5, 6, 7, 8, 9
    vTr = 10
    vL16, vVoff = 14, 15
    vB = 32
    vAcc = 64
    vA = 128

    a(f"""
    s_cmp_ge_u32 s2, 224
    s_cbranch_scc1 {L_end}
    s_load_dwordx4 s[4:7], s[0:1], 0
    s_load_dwordx2 s[8:9], s[0:1], 32
    s_load_dwordx2 s[10:11], s[0:1], 80
    s_and_b32 s{sT}, s2, 7
    s_mul_i32 s{sT}, s{sT}, 28
    s_lshr_b32 s{sT2}, s2, 3
    s_add_u32 s{sT}, s{sT}, s{sT2}
    s_lshr_b32 s{sCb}, s{sT}, 4
    s_and_b32 s{sRb}, s{sT}, 15
    v_lshrrev_b32 v{vT1}, 6, v0
    v_and_b32 v{vLane}, 63, v0
    s_mov_b32 s{sOnes}, 0x3f803f80
    v_readfirstlane_b32 s{sWave}, v{vT1}
    s_mov_b32 s{sMask}, 0xffff0000
    s_nop 2
    s_lshr_b32 s{sWq}, s{sWave}, 2
    s_and_b32 s{sWm}, s{sWave}, 3
    """)
    a.c("active = !(wq==1 && cb>=12)")
    a(f"""
    s_cmp_ge_u32 s{sCb}, 12
    s_cselect_b32 s{sT}, 1, 0
    s_and_b32 s{sT}, s{sT}, s{sWq}
    s_xor_b32 s{sAct}, s{sT}, 1
    s_cmp_eq_u32 s{sWq}, 0
    s_mov_b32 s{sRS}, 3072
    s_cmov_b32 s{sRS}, 3584
    s_lshl_b32 s{sRS32}, s{sRS}, 5
    s_lshl_b32 s{sRS4}, s{sRS}, 2
    s_lshl_b32 s{sCur}, s{sRS}, 3
    s_mul_i32 s{sCur}, s{sCur}, s{sWm}
    s_lshl_b32 s{sT}, s{sCb}, 8
    s_add_u32 s{sCur}, s{sCur}, s{sT}
    s_lshl_b32 s{sLdsW}, s{sWq}, 13
    s_lshl_b32 s{sT}, s{sWm}, 11
    s_add_u32 s{sLdsW}, s{sLdsW}, s{sT}
    s_lshl_b32 s{sTT}, s{sRb}, 2
    s_add_u32 s{sTT}, s{sTT}, s{sWm}
    """)
    a.c("W DMA lane offset: (L/16)*rowstride + ((L%16) ^ (4*(L/16)))*16")
    a(f"""
    v_lshrrev_b32 v{vT1}, 4, v{vLane}
    v_and_b32 v{vT2}, 15, v{vLane}
    v_lshlrev_b32 v{vT3}, 2, v{vT1}
    v_xor_b32 v{vT2}, v{vT2}, v{vT3}
    v_lshlrev_b32 v{vT2}, 4, v{vT2}
    v_mad_u32_u24 v{vWoff}, v{vT1}, s{sRS}, v{vT2}
    """)
    a.c("x load offset: (rb*128 + 16*wave + L/4)*1024 + (L%4)*16")
    a(f"""
    s_lshl_b32 s{sT}, s{sRb}, 7
    s_lshl_b32 s{sT2}, s{sWave}, 4
    s_add_u32 s{sT}, s{sT}, s{sT2}
    v_lshrrev_b32 v{vT1}, 2, v{vLane}
    v_add_u32 v{vT2}, s{sT}, v{vT1}
    v_lshlrev_b32 v{vT2}, 10, v{vT2}
    v_and_b32 v{vT3}, 3, v{vLane}
    v_lshl_add_u32 v{vXoff}, v{vT3}, 4, v{vT2}
    """)
    a.c("LDS write addr: (wave/2)*32768 + c4*512 + ((16*(wave%2) + L/4) ^ (2*c4))*16")
    a(f"""
    s_and_b32 s{sT}, s{sWave}, 1
    s_lshl_b32 s{sT}, s{sT}, 4
    v_add_u32 v{vT1}, s{sT}, v{vT1}
    v_lshlrev_b32 v{vT2}, 1, v{vT3}
    v_xor_b32 v{vT1}, v{vT1}, v{vT2}
    v_lshlrev_b32 v{vT1}, 4, v{vT1}
    v_lshl_add_u32 v{vT1}, v{vT3}, 9, v{vT1}
    s_lshr_b32 s{sT}, s{sWave}, 1
    s_lshl_b32 s{sT}, s{sT}, 15
    v_add_u32 v{vLdsWr}, s{sT}, v{vT1}
    s_waitcnt lgkmcnt(0)
    """)
    a.srd(sX, 4, 2048 * 1024)
    a.srd(sWS, 10, WS_SIZE)
    a(f"""
    s_cmp_eq_u32 s{sWq}, 0
    s_cselect_b32 s{sW}, s8, s6
    s_cselect_b32 s{sW+1}, s9, s7
    s_mov_b32 s{sW+2}, {512*3072}
    s_cmov_b32 s{sW+2}, {512*3584}
    s_and_b32 s{sW+1}, s{sW+1}, 0xffff
    s_mov_b32 s{sW+3}, 0x20000
    """)

    def slot(j):
        return (j + 8) % 10

    def dma_chunk(j):
        a(f"""
        s_add_u32 m0, s{sLdsW}, {slot(j)*16384}
        s_add_u32 s{sT}, s{sCur}, s{sRS4}
        buffer_load_dwordx4 v{vWoff}, s[{sW}:{sW+3}], s{sCur} offen lds
        s_add_u32 m0, s{sLdsW}, {slot(j)*16384+1024}
        s_add_u32 s{sCur}, s{sCur}, s{sRS32}
        buffer_load_dwordx4 v{vWoff}, s[{sW}:{sW+3}], s{sT} offen lds
        """)

    L_nodma0 = 'L_k1_nodma0'
    a(f"""
    s_cmp_eq_u32 s{sAct}, 0
    s_cbranch_scc1 {L_nodma0}
    """)
    dma_chunk(0)
    dma_chunk(1)
    a.label(L_nodma0)
    a.c("x loads")
    for i in range(16):
        a(f"buffer_load_dwordx4 v[{vAcc+4*i}:{vAcc+4*i+3}], v{vXoff}, s[{sX}:{sX+3}], 0 offen offset:{64*i}")
    a.c("address regs for later phases (while loads fly)")
    a(f"""
    v_lshrrev_b32 v{vT1}, 5, v{vLane}
    v_and_b32 v{vT2}, 31, v{vLane}
    v_lshlrev_b32 v{vT3}, 1, v{vT1}
    v_xor_b32 v{vT2}, v{vT2}, v{vT3}
    v_lshlrev_b32 v{vAE}, 4, v{vT2}
    v_xor_b32 v{vT2}, 4, v{vT2}
    v_lshlrev_b32 v{vAO}, 4, v{vT2}
    s_lshl_b32 s{sT}, s{sWm}, 15
    v_lshl_add_u32 v{vT1}, v{vT1}, 9, s{sT}
    v_add_u32 v{vAE}, v{vAE}, v{vT1}
    v_add_u32 v{vAO}, v{vAO}, v{vT1}
    """)
    a(f"""
    v_lshrrev_b32 v{vT1}, 5, v{vLane}
    v_bfe_u32 v{vT2}, v{vLane}, 2, 2
    v_lshl_add_u32 v{vT1}, v{vT1}, 3, v{vT2}
    v_lshlrev_b32 v{vT1}, 8, v{vT1}
    v_bfe_u32 v{vT3}, v{vLane}, 4, 1
    v_lshl_add_u32 v{vT1}, v{vT3}, 5, v{vT1}
    v_and_b32 v{vT3}, 3, v{vLane}
    v_lshl_add_u32 v{vT1}, v{vT3}, 3, v{vT1}
    s_lshl_b32 s{sT}, s{sWq}, 13
    v_add_u32 v{vT1}, s{sT}, v{vT1}
    """)
    for ct in range(4):
        a(f"""
        v_xor_b32 v{vT3}, {ct}, v{vT2}
        v_lshl_add_u32 v{vTr+ct}, v{vT3}, 6, v{vT1}
        """)
    a(f"""
    v_lshlrev_b32 v{vL16}, 4, v{vLane}
    v_bfe_u32 v{vT1}, v{vLane}, 4, 1
    v_lshlrev_b32 v{vT1}, 16, v{vT1}
    v_lshrrev_b32 v{vT2}, 5, v{vLane}
    v_lshl_add_u32 v{vT1}, v{vT2}, 8, v{vT1}
    v_and_b32 v{vT2}, 15, v{vLane}
    v_lshl_add_u32 v{vVoff}, v{vT2}, 4, v{vT1}
    """)
    vS, vQ = 16, 20
    for d in range(4):
        a(f"v_mov_b32 v{vS+d}, 0\nv_mov_b32 v{vQ+d}, 0")
    for i in range(16):
        if i % 2 == 0:
            a(f"s_waitcnt vmcnt({14-i})")
        for d in range(4):
            x = vAcc + 4 * i + d
            a(f"v_dot2c_f32_bf16 v{vS+d}, s{sOnes}, v{x}")
            a(f"v_dot2c_f32_bf16 v{vQ+d}, v{x}, v{x}")
    a.nop(3)
    vNM, vRI = 24, 26
    a(f"""
    v_add_f32 v{vS}, v{vS}, v{vS+1}
    v_add_f32 v{vS+2}, v{vS+2}, v{vS+3}
    v_add_f32 v{vQ}, v{vQ}, v{vQ+1}
    v_add_f32 v{vQ+2}, v{vQ+2}, v{vQ+3}
    v_add_f32 v{vS}, v{vS}, v{vS+2}
    v_add_f32 v{vQ}, v{vQ}, v{vQ+2}
    s_nop 1
    v_add_f32_dpp v{vS+1}, v{vS}, v{vS} quad_perm:[1,0,3,2] row_mask:0xf bank_mask:0xf
    v_add_f32_dpp v{vQ+1}, v{vQ}, v{vQ} quad_perm:[1,0,3,2] row_mask:0xf bank_mask:0xf
    s_nop 1
    v_add_f32_dpp v{vS}, v{vS+1}, v{vS+1} quad_perm:[2,3,0,1] row_mask:0xf bank_mask:0xf
    v_add_f32_dpp v{vQ}, v{vQ+1}, v{vQ+1} quad_perm:[2,3,0,1] row_mask:0xf bank_mask:0xf
    v_mul_f32 v{vS}, {f2u(1.0/512):#x}, v{vS}
    v_mul_f32 v{vQ}, {f2u(1.0/512):#x}, v{vQ}
    v_fma_f32 v{vQ}, -v{vS}, v{vS}, v{vQ}
    v_max_f32 v{vQ}, 0, v{vQ}
    v_cvt_pk_bf16_f32 v{vS+1}, v{vS}, v{vQ}
    v_lshlrev_b32 v{vNM}, 16, v{vS+1}
    v_xor_b32 v{vNM}, 0x80000000, v{vNM}
    v_and_b32 v{vQ}, s{sMask}, v{vS+1}
    v_add_f32 v{vQ}, {f2u(1e-5):#x}, v{vQ}
    v_cvt_pk_bf16_f32 v{vQ}, v{vQ}, v{vQ}
    v_and_b32 v{vQ}, s{sMask}, v{vQ}
    v_sqrt_f32 v{vQ}, v{vQ}
    s_nop 0
    v_cvt_pk_bf16_f32 v{vQ}, v{vQ}, v{vQ}
    v_and_b32 v{vQ}, s{sMask}, v{vQ}
    v_rcp_f32 v{vRI}, v{vQ}
    s_nop 0
    v_fma_f32 v{vS}, -v{vQ}, v{vRI}, 1.0
    v_fma_f32 v{vRI}, v{vS}, v{vRI}, v{vRI}
    """)
    T = vB
    for i in range(16):
        xs = [vAcc + 4 * i + d for d in range(4)]
        tb = T + 8 * (i % 2)
        for d in range(4):
            a(f"v_lshlrev_b32 v{tb+2*d}, 16, v{xs[d]}")
            a(f"v_and_b32 v{tb+2*d+1}, s{sMask}, v{xs[d]}")
        for d in range(4):
            a(f"v_pk_add_f32 v[{tb+2*d}:{tb+2*d+1}], v[{tb+2*d}:{tb+2*d+1}], v[{vNM}:{vNM+1}] op_sel_hi:[1,0]")
        for d in range(4):
            a(f"v_cvt_pk_bf16_f32 v{xs[d]}, v{tb+2*d}, v{tb+2*d+1}")
        for d in range(4):
            a(f"v_lshlrev_b32 v{tb+2*d}, 16, v{xs[d]}")
            a(f"v_and_b32 v{tb+2*d+1}, s{sMask}, v{xs[d]}")
        for d in range(4):
            a(f"v_pk_mul_f32 v[{tb+2*d}:{tb+2*d+1}], v[{tb+2*d}:{tb+2*d+1}], v[{vRI}:{vRI+1}] op_sel_hi:[1,0]")
        for d in range(4):
            a(f"v_cvt_pk_bf16_f32 v{xs[d]}, v{tb+2*d}, v{tb+2*d+1}")
        a(f"ds_write_b128 v{vLdsWr}, v[{xs[0]}:{xs[3]}] offset:{2048*i}")
    a("s_waitcnt lgkmcnt(0)\ns_barrier")
    L_idle = 'L_k1_idle'
    a(f"""
    s_cmp_eq_u32 s{sAct}, 0
    s_cbranch_scc1 {L_idle}
    """)
    for g in range(32):
        a(f"ds_read_b128 v[{vA+4*g}:{vA+4*g+3}], v{vAE if g % 2 == 0 else vAO} offset:{1024*g}")
    a("s_waitcnt vmcnt(0) lgkmcnt(0)\ns_barrier")
    for j in range(2, 10):
        dma_chunk(j)

    L_vtype = 'L_k1_vtype'
    L_epiV = 'L_k1_epiV'
    a.c("V type: wq==1 && cb>=8")
    a(f"""
    s_cmp_ge_u32 s{sCb}, 8
    s_cselect_b32 s{sT}, 1, 0
    s_and_b32 s{sT}, s{sT}, s{sWq}
    s_cmp_eq_u32 s{sT}, 1
    s_cbranch_scc1 {L_vtype}
    """)

    def mainloop(normal):
        win = [0]

        def reads(s):
            j, ks = s // 2, s % 2
            base = slot(j) * 16384
            w = base // 49152 * 49152
            if w != win[0]:
                for ct in range(4):
                    a(f"v_add_u32 v{vTr+ct}, {(w - win[0]) & 0xffffffff:#x}, v{vTr+ct}")
                win[0] = w
            bs = vB + 16 * (s % 2)
            for ct in range(4):
                for hr in range(2):
                    off = base - w + (16 * ks + 4 * hr) * 256
                    a(f"ds_read_b64_tr_b16 v[{bs+4*ct+2*hr}:{bs+4*ct+2*hr+1}], v{vTr+ct} offset:{off}")

        reads(0)
        for s in range(32):
            if s + 1 < 32:
                m = (s + 1) // 2
                if (s + 1) % 2 == 0 and m >= 2:
                    last = min(15, max(9, m + 7))
                    a(f"s_waitcnt vmcnt({2*(last-m)})\ns_barrier")
                    if m + 8 <= 15:
                        dma_chunk(m + 8)
                reads(s + 1)
                a("s_waitcnt lgkmcnt(8)")
            else:
                a("s_waitcnt lgkmcnt(0)")
            bs = vB + 16 * (s % 2)
            for ct in range(4):
                A = f"v[{vA+4*s}:{vA+4*s+3}]"
                B = f"v[{bs+4*ct}:{bs+4*ct+3}]"
                D = f"v[{vAcc+16*ct}:{vAcc+16*ct+15}]"
                C = D if s > 0 else "0"
                if normal:
                    a(f"v_mfma_f32_32x32x16_bf16 {D}, {A}, {B}, {C}")
                else:
                    a(f"v_mfma_f32_32x32x16_bf16 {D}, {B}, {A}, {C}")
        a.nop(20)

    mainloop(False)
    L_epiZ = 'L_k1_epiZ'
    P = vB
    a(f"""
    s_cmp_eq_u32 s{sWq}, 0
    s_cbranch_scc1 {L_epiZ}
    """)
    a.c("Q or K: base = (cb<4 ? QF : KF) + (cb%4)*8*65536 + tt*1024 ; note KF-QF = 4*8*65536")
    L_noscale = 'L_k1_noscale'
    a(f"""
    s_lshl_b32 s{sBase}, s{sCb}, 19
    s_lshl_b32 s{sT}, s{sTT}, 10
    s_add_u32 s{sBase}, s{sBase}, s{sT}
    s_cmp_ge_u32 s{sCb}, 4
    s_cbranch_scc1 {L_noscale}
    s_mov_b32 s{sT2}, {f2u(QSCALE):#x}
    """)
    assert KF - QF == 4 * 8 * 65536 and QF == 0
    for i in range(64):
        a(f"v_mul_f32 v{vAcc+i}, s{sT2}, v{vAcc+i}")
    a.label(L_noscale)
    for g in range(8):
        for d in range(4):
            a(f"v_cvt_pk_bf16_f32 v{P+4*g+d}, v{vAcc+8*g+2*d}, v{vAcc+8*g+2*d+1}")
        a(f"s_add_u32 s{sT}, s{sBase}, {g*65536}")
        a(f"buffer_store_dwordx4 v[{P+4*g}:{P+4*g+3}], v{vL16}, s[{sWS}:{sWS+3}], s{sT} offen")
    a("s_endpgm")

    a.label(L_epiZ)
    a.c("z: gelu, store, stats")
    vC1, vC2, vOne = 16, 18, 20
    vSs, vSq = 22, 24
    a(f"""
    v_mov_b32 v{vC1}, {f2u(GC1):#x}
    v_mov_b32 v{vC2}, {f2u(GC2):#x}
    v_mov_b32 v{vOne}, 1.0
    v_mov_b32 v{vSs}, 0
    v_mov_b32 v{vSs+1}, 0
    v_mov_b32 v{vSq}, 0
    v_mov_b32 v{vSq+1}, 0
    s_cmp_ge_u32 s{sCb}, 7
    s_mov_b32 s{sBase}, {Z1F}
    s_cmov_b32 s{sBase}, {Z2F - 7*8192}
    s_lshl_b32 s{sT}, s{sCb}, 13
    s_add_u32 s{sBase}, s{sBase}, s{sT}
    s_mul_i32 s{sT}, s{sTT}, 57344
    s_add_u32 s{sBase}, s{sBase}, s{sT}
    """)
    G = vA
    for g in range(8):
        t = G + 8 * (g % 2)
        h = vAcc + 8 * g
        for d in range(4):
            a(f"v_pk_mul_f32 v[{t+2*d}:{t+2*d+1}], v[{h+2*d}:{h+2*d+1}], v[{h+2*d}:{h+2*d+1}]")
        for d in range(4):
            a(f"v_pk_fma_f32 v[{t+2*d}:{t+2*d+1}], v[{t+2*d}:{t+2*d+1}], v[{vC2}:{vC2+1}], v[{vC1}:{vC1+1}] op_sel_hi:[1,0,0]")
        for d in range(4):
            a(f"v_pk_mul_f32 v[{t+2*d}:{t+2*d+1}], v[{t+2*d}:{t+2*d+1}], v[{h+2*d}:{h+2*d+1}]")
        for d in range(8):
            a(f"v_exp_f32 v{t+d}, v{t+d}")
        for d in range(4):
            a(f"v_pk_add_f32 v[{t+2*d}:{t+2*d+1}], v[{t+2*d}:{t+2*d+1}], v[{vOne}:{vOne+1}] op_sel_hi:[1,0]")
        for d in range(8):
            a(f"v_rcp_f32 v{t+d}, v{t+d}")
        for d in range(4):
            a(f"v_pk_mul_f32 v[{t+2*d}:{t+2*d+1}], v[{t+2*d}:{t+2*d+1}], v[{h+2*d}:{h+2*d+1}]")
        for d in range(4):
            a(f"v_cvt_pk_bf16_f32 v{P+4*g+d}, v{t+2*d}, v{t+2*d+1}")
        a(f"s_add_u32 s{sT}, s{sBase}, {g*1024}")
        a(f"buffer_store_dwordx4 v[{P+4*g}:{P+4*g+3}], v{vL16}, s[{sWS}:{sWS+3}], s{sT} offen")
        for d in range(4):
            a(f"v_dot2c_f32_bf16 v{vSs+d%2}, s{sOnes}, v{P+4*g+d}")
            a(f"v_dot2c_f32_bf16 v{vSq+d%2}, v{P+4*g+d}, v{P+4*g+d}")
    a(f"""
    s_cmp_lt_u32 s{sCb}, 7
    s_cbranch_scc1 {L_end}
    s_nop 2
    v_add_f32 v{vSs}, v{vSs}, v{vSs+1}
    v_add_f32 v{vSq}, v{vSq}, v{vSq+1}
    v_mov_b32 v{vSs+1}, v{vSs}
    v_mov_b32 v{vSq+1}, v{vSq}
    s_nop 1
    v_permlane32_swap_b32 v{vSs}, v{vSs+1}
    v_permlane32_swap_b32 v{vSq}, v{vSq+1}
    s_nop 1
    v_add_f32 v{vSs}, v{vSs}, v{vSs+1}
    v_add_f32 v{vSs+1}, v{vSq}, v{vSq+1}
    v_and_b32 v{vT1}, 31, v{vLane}
    v_lshlrev_b32 v{vT1}, 3, v{vT1}
    s_sub_u32 s{sT}, s{sCb}, 7
    s_lshl_b32 s{sT}, s{sT}, 14
    s_lshl_b32 s{sT2}, s{sTT}, 8
    s_add_u32 s{sT}, s{sT}, s{sT2}
    s_add_u32 s{sT}, s{sT}, {ST}
    buffer_store_dwordx2 v[{vSs}:{vSs+1}], v{vT1}, s[{sWS}:{sWS+3}], s{sT} offen
    s_endpgm
    """)

    a.label(L_vtype)
    mainloop(True)
    a(f"""
    s_sub_u32 s{sT}, s{sCb}, 8
    s_lshl_b32 s{sBase}, s{sT}, 19
    s_lshl_b32 s{sT}, s{sTT}, 10
    s_add_u32 s{sBase}, s{sBase}, s{sT}
    s_add_u32 s{sBase}, s{sBase}, {VF}
    """)
    for g in range(8):
        ct, j = g // 2, g % 2
        for d in range(4):
            a(f"v_cvt_pk_bf16_f32 v{P+4*g+d}, v{vAcc+8*g+2*d}, v{vAcc+8*g+2*d+1}")
        a(f"s_add_u32 s{sT}, s{sBase}, {ct*2*65536}")
        a(f"buffer_store_dwordx4 v[{P+4*g}:{P+4*g+3}], v{vVoff}, s[{sWS}:{sWS+3}], s{sT} offen offset:{j*512}")
    a("s_endpgm")

    a.label(L_idle)
    for i in range(15):
        a("s_barrier")
    a.label(L_end)
    a("s_endpgm")
    a.kernel_end(name, 256, 64)
```

```python
from asmlib import *
from gen_k1 import *

MSHIFT = 80.0


def mfma(a, D, A, B, C):
    Cs = "0" if C is None else f"v[{C}:{C+15}]"
    a(f"v_mfma_f32_32x32x16_bf16 v[{D}:{D+15}], v[{A}:{A+3}], v[{B}:{B+3}], {Cs}")


def ln_scalars(a, vS, vQ, vNM, vRI, vT, sMask, n):
    a(f"""
    v_mul_f32 v{vS}, {f2u(1.0/n):#x}, v{vS}
    v_mul_f32 v{vQ}, {f2u(1.0/n):#x}, v{vQ}
    v_fma_f32 v{vQ}, -v{vS}, v{vS}, v{vQ}
    v_max_f32 v{vQ}, 0, v{vQ}
    v_cvt_pk_bf16_f32 v{vT}, v{vS}, v{vQ}
    v_lshlrev_b32 v{vNM}, 16, v{vT}
    v_xor_b32 v{vNM}, 0x80000000, v{vNM}
    v_and_b32 v{vQ}, s{sMask}, v{vT}
    v_add_f32 v{vQ}, {f2u(1e-5):#x}, v{vQ}
    v_cvt_pk_bf16_f32 v{vQ}, v{vQ}, v{vQ}
    v_and_b32 v{vQ}, s{sMask}, v{vQ}
    v_sqrt_f32 v{vQ}, v{vQ}
    s_nop 0
    v_cvt_pk_bf16_f32 v{vQ}, v{vQ}, v{vQ}
    v_and_b32 v{vQ}, s{sMask}, v{vQ}
    v_rcp_f32 v{vRI}, v{vQ}
    s_nop 0
    v_fma_f32 v{vS}, -v{vQ}, v{vRI}, 1.0
    v_fma_f32 v{vRI}, v{vS}, v{vRI}, v{vRI}
    """)


def ln_apply4(a, x0, tb, vNM, vRI, sMask):
    xs = [x0 + d for d in range(4)]
    for d in range(4):
        a(f"v_lshlrev_b32 v{tb+2*d}, 16, v{xs[d]}")
        a(f"v_and_b32 v{tb+2*d+1}, s{sMask}, v{xs[d]}")
    for d in range(4):
        a(f"v_pk_add_f32 v[{tb+2*d}:{tb+2*d+1}], v[{tb+2*d}:{tb+2*d+1}], v[{vNM}:{vNM+1}] op_sel_hi:[1,0]")
    for d in range(4):
        a(f"v_cvt_pk_bf16_f32 v{xs[d]}, v{tb+2*d}, v{tb+2*d+1}")
    for d in range(4):
        a(f"v_lshlrev_b32 v{tb+2*d}, 16, v{xs[d]}")
        a(f"v_and_b32 v{tb+2*d+1}, s{sMask}, v{xs[d]}")
    for d in range(4):
        a(f"v_pk_mul_f32 v[{tb+2*d}:{tb+2*d+1}], v[{tb+2*d}:{tb+2*d+1}], v[{vRI}:{vRI+1}] op_sel_hi:[1,0]")
    for d in range(4):
        a(f"v_cvt_pk_bf16_f32 v{xs[d]}, v{tb+2*d}, v{tb+2*d+1}")


def role_attn(a, opts):
    sWS = 8
    sWave, sHead, sQb, sT, sT2, sKoff, sLds, sC, sSlot, sSlotN, sOut = 24, 25, 26, 27, 28, 29, 30, 31, 32, 33, 34
    sVm = 36
    sCls = 38
    sBad = 40
    vLane, vT1, vT2, vL16, vVl = 1, 2, 3, 4, 5
    vKa, vVa, vKn = 6, 7, 8
    vVn = 9
    vQ = 12
    vK = 20
    vV = 28
    vP = 44
    vS = 64
    vNC = 96
    vO = 128
    vTmp = 160

    a.c("==== attention role")
    a(f"""
    s_and_b32 s{sT}, s2, 7
    s_lshr_b32 s{sT2}, s2, 3
    s_lshl_b32 s{sHead}, s{sT}, 2
    s_lshr_b32 s{sT}, s{sT2}, 3
    s_add_u32 s{sHead}, s{sHead}, s{sT}
    s_and_b32 s{sQb}, s{sT2}, 7
    v_lshlrev_b32 v{vL16}, 4, v{vLane}
    s_lshl_b32 s{sKoff}, s{sHead}, 16
    s_lshl_b32 s{sLds}, s{sWave}, 11
    s_add_u32 s{sKoff}, s{sKoff}, s{sLds}
    s_add_u32 s{sKoff}, s{sKoff}, {KF}
    """)

    def dma_chunk(slot_expr_imm=None, sslot=None):
        if sslot is None:
            a(f"s_add_u32 m0, s{sLds}, {slot_expr_imm}")
        else:
            a(f"s_add_u32 m0, s{sLds}, s{sslot}")
        a(f"""
        s_add_u32 s{sT}, s{sKoff}, {VF-KF}
        buffer_load_dwordx4 v{vL16}, s[{sWS}:{sWS+3}], s{sKoff} offen lds
        buffer_load_dwordx4 v{vL16}, s[{sWS}:{sWS+3}], s{sKoff} offen offset:1024 lds
        s_add_u32 m0, m0, 8192
        s_add_u32 s{sKoff}, s{sKoff}, 8192
        buffer_load_dwordx4 v{vL16}, s[{sWS}:{sWS+3}], s{sT} offen lds
        buffer_load_dwordx4 v{vL16}, s[{sWS}:{sWS+3}], s{sT} offen offset:1024 lds
        """)

    a.c("Q loads: QF + head*65536 + (8*qb + 2*w)*1024")
    a(f"""
    s_lshl_b32 s{sT}, s{sQb}, 3
    s_lshl_b32 s{sT2}, s{sWave}, 1
    s_add_u32 s{sT}, s{sT}, s{sT2}
    s_mul_i32 s{sOut}, s{sT}, 90112
    s_lshl_b32 s{sT}, s{sT}, 10
    s_lshl_b32 s{sT2}, s{sHead}, 16
    s_add_u32 s{sT}, s{sT}, s{sT2}
    buffer_load_dwordx4 v[{vQ}:{vQ+3}], v{vL16}, s[{sWS}:{sWS+3}], s{sT} offen
    buffer_load_dwordx4 v[{vQ+4}:{vQ+7}], v{vL16}, s[{sWS}:{sWS+3}], s{sT} offen offset:1024
    s_lshl_b32 s{sT2}, s{sHead}, 10
    s_add_u32 s{sOut}, s{sOut}, s{sT2}
    s_add_u32 s{sOut}, s{sOut}, {AF}
    """)
    for c in range(3):
        dma_chunk(c * 16384)
    a.c("V lane offset: hf*256 + (l%16)*16 ; mask lanes (l%32)<16")
    a(f"""
    v_lshrrev_b32 v{vT1}, 5, v{vLane}
    v_and_b32 v{vT2}, 15, v{vLane}
    v_lshlrev_b32 v{vT2}, 4, v{vT2}
    v_lshl_add_u32 v{vVl}, v{vT1}, 8, v{vT2}
    s_mov_b32 s{sVm}, 0x0000ffff
    s_mov_b32 s{sVm+1}, 0x0000ffff
    v_mov_b32 v{vKa}, v{vL16}
    v_add_u32 v{vVa}, 8192, v{vVl}
    s_mov_b32 s{sT}, 0x3f803f80
    """)
    for i in range(16):
        a(f"v_mov_b32 v{vV+i}, s{sT}")
    for i in range(16):
        a(f"v_mov_b32 v{vP+i}, 0")
    for i in range(32):
        a(f"v_mov_b32 v{vO+i}, 0")
    a("s_waitcnt vmcnt(8)\ns_barrier")
    a.c("sample max over first 64 keys")
    a(f"""
    ds_read_b128 v[{vK}:{vK+3}], v{vKa}
    ds_read_b128 v[{vK+4}:{vK+7}], v{vKa} offset:1024
    s_mov_b64 exec, s[{sVm}:{sVm+1}]
    ds_read_b128 v[{vV}:{vV+3}], v{vVa}
    ds_read_b128 v[{vV+4}:{vV+7}], v{vVa} offset:512
    s_mov_b64 exec, -1
    s_waitcnt lgkmcnt(2)
    """)
    for qa in range(2):
        for t in range(2):
            mfma(a, vTmp + 32 * qa + 16 * t, vK + 4 * t, vQ + 4 * qa, None)
    a.nop(16)
    for qa in range(2):
        b = vTmp + 32 * qa
        n = 32
        cur = list(range(b, b + 32))
        while len(cur) > 1:
            nxt = []
            i = 0
            while i < len(cur):
                if i + 2 < len(cur):
                    a(f"v_max3_f32 v{cur[i]}, v{cur[i]}, v{cur[i+1]}, v{cur[i+2]}")
                    nxt.append(cur[i]); i += 3
                elif i + 1 < len(cur):
                    a(f"v_max_f32 v{cur[i]}, v{cur[i]}, v{cur[i+1]}")
                    nxt.append(cur[i]); i += 2
                else:
                    nxt.append(cur[i]); i += 1
            cur = nxt
        a(f"""
        v_mov_b32 v{b+1}, v{b}
        s_nop 1
        v_permlane32_swap_b32 v{b}, v{b+1}
        s_nop 1
        v_max_f32 v{b}, v{b}, v{b+1}
        v_sub_f32 v{b}, {f2u(-MSHIFT):#x}, v{b}
        """)
        for i in range(16):
            a(f"v_mov_b32 v{vNC+16*qa+i}, v{b}")
    a(f"""
    s_mov_b32 s{sC}, 0
    s_mov_b32 s{sSlot}, 0
    s_nop 1
    """)
    mfma(a, vS, vK, vQ, vNC)
    a.nop(12)
    if opts.get('prio_attn'):
        a(f"s_setprio {opts['prio_attn']}")
    L_loop = 'L_att_loop'
    a(".p2align 6")
    a.label(L_loop)
    a.c("next chunk addresses")
    a(f"""
    s_add_u32 s{sSlotN}, s{sSlot}, 16384
    s_and_b32 s{sSlotN}, s{sSlotN}, 0xffff
    v_add_u32 v{vKn}, s{sSlotN}, v{vL16}
    s_add_u32 s{sT}, s{sSlotN}, 8192
    v_add_u32 v{vVn}, s{sT}, v{vVl}
    """)
    for t in range(8):
        for qa in range(2):
            u = 2 * t + qa
            S = vS + 16 * (u % 2)
            Sn = vS + 16 * ((u + 1) % 2)
            P = vP + 8 * (u % 2)
            Pp = vP + 8 * ((u + 1) % 2)
            Kc = vK + 4 * (t % 2)
            Kn = vK + 4 * ((t + 1) % 2)
            Vc = vV + 8 * (t % 2)
            Vn = vV + 8 * ((t + 1) % 2)
            if qa == 0:
                if t == 6:
                    L1 = a.newlabel('att_w')
                    L2 = a.newlabel('att_d')
                    a(f"""
                    s_waitcnt vmcnt(4)
                    s_cmp_lt_u32 s{sC}, 6
                    s_cbranch_scc1 {L1}
                    s_waitcnt vmcnt(0)
                    """)
                    a.label(L1)
                    a(f"""
                    s_barrier
                    s_cmp_ge_u32 s{sC}, 5
                    s_cbranch_scc1 {L2}
                    s_add_u32 s{sT2}, s{sSlot}, 49152
                    s_and_b32 s{sT2}, s{sT2}, 0xffff
                    """)
                    dma_chunk(sslot=sT2)
                    a.label(L2)
                if t < 7:
                    a(f"ds_read_b128 v[{Kn}:{Kn+3}], v{vKa} offset:{1024*(t+1)}")
                else:
                    a(f"ds_read_b128 v[{Kn}:{Kn+3}], v{vKn}")
                mfma(a, Sn, Kc, vQ + 4, vNC + 16)
            else:
                a("s_waitcnt lgkmcnt(0)")
                mfma(a, Sn, Kn, vQ, vNC)
            for i in range(4):
                a(f"v_exp_f32 v{S+i}, v{S+i}")
            if qa == 0:
                mfma(a, vO + 16, Vn + 4, Pp + 4, vO + 16)
            else:
                mfma(a, vO, Vc + 4, Pp + 4, vO)
                a(f"s_mov_b64 exec, s[{sVm}:{sVm+1}]")
                if t < 7:
                    a(f"ds_read_b128 v[{Vn}:{Vn+3}], v{vVa} offset:{1024*(t+1)}")
                    a(f"ds_read_b128 v[{Vn+4}:{Vn+7}], v{vVa} offset:{1024*(t+1)+512}")
                else:
                    a(f"ds_read_b128 v[{Vn}:{Vn+3}], v{vVn}")
                    a(f"ds_read_b128 v[{Vn+4}:{Vn+7}], v{vVn} offset:512")
                a("s_mov_b64 exec, -1")
            for i in range(4, 8):
                a(f"v_exp_f32 v{S+i}, v{S+i}")
            for d in range(4):
                a(f"v_cvt_pk_bf16_f32 v{P+d}, v{S+2*d}, v{S+2*d+1}")
            for i in range(8, 10):
                a(f"v_exp_f32 v{S+i}, v{S+i}")
            if qa == 0:
                a("s_waitcnt lgkmcnt(1)")
            mfma(a, vO + 16 * qa, Vc, P, vO + 16 * qa)
            for i in range(10, 16):
                a(f"v_exp_f32 v{S+i}, v{S+i}")
            for d in range(4, 8):
                a(f"v_cvt_pk_bf16_f32 v{P+d}, v{S+2*d}, v{S+2*d+1}")
    a(f"""
    v_mov_b32 v{vKa}, v{vKn}
    v_mov_b32 v{vVa}, v{vVn}
    s_mov_b32 s{sSlot}, s{sSlotN}
    s_add_u32 s{sC}, s{sC}, 1
    s_cmp_lt_u32 s{sC}, 8
    s_cbranch_scc1 {L_loop}
    """)
    mfma(a, vO + 16, vV + 8 + 4, vP + 8 + 4, vO + 16)
    a("s_setprio 0")
    a("s_waitcnt lgkmcnt(0)")
    a.nop(20)
    a.c("validity check")
    L_fb = 'L_att_fallback'
    L_fin = 'L_att_fin'
    a(f"""
    s_mov_b32 s{sCls}, 0x2ff
    s_mov_b64 s[{sBad}:{sBad+1}], 0
    """)
    for qa in range(2):
        a(f"v_cmp_class_f32 vcc, v{vO+16*qa+8}, s{sCls}".replace("vcc, v", "s[42:43], v"))
        a(f"s_or_b64 s[{sBad}:{sBad+1}], s[{sBad}:{sBad+1}], s[42:43]")
    a(f"s_mov_b32 s{sCls}, 0x207")
    for qa in range(2):
        for i in range(8):
            a(f"v_cmp_class_f32 s[42:43], v{vO+16*qa+i}, s{sCls}")
            a(f"s_or_b64 s[{sBad}:{sBad+1}], s[{sBad}:{sBad+1}], s[42:43]")
    if opts.get('force_fallback'):
        a(f"s_branch {L_fb}")
    a(f"""
    s_cmp_lg_u64 s[{sBad}:{sBad+1}], 0
    s_cbranch_scc1 {L_fb}
    """)
    a.label(L_fin)
    for qa in range(2):
        o = vO + 16 * qa
        a(f"v_rcp_f32 v{o+9}, v{o+8}")
        a("s_nop 0")
        a(f"v_fma_f32 v{o+10}, -v{o+8}, v{o+9}, 1.0")
        a(f"v_fma_f32 v{o+9}, v{o+10}, v{o+9}, v{o+9}")
        for i in range(8):
            a(f"v_mul_f32 v{o+i}, v{o+i}, v{o+9}")
        for d in range(4):
            a(f"v_cvt_pk_bf16_f32 v{vP+4*qa+d}, v{o+2*d}, v{o+2*d+1}")
        a(f"s_add_u32 s{sT}, s{sOut}, {90112*qa}")
        a(f"buffer_store_dwordx4 v[{vP+4*qa}:{vP+4*qa+3}], v{vL16}, s[{sWS}:{sWS+3}], s{sT} offen")
    a("s_endpgm")

    a.label(L_fb)
    vM = vTmp
    vAl = vTmp + 2
    vMx = vTmp + 4
    a(f"""
    s_lshl_b32 s{sKoff}, s{sHead}, 16
    s_add_u32 s{sKoff}, s{sKoff}, {KF}
    s_mov_b32 s{sC}, 0
    v_mov_b32 v{vM}, {f2u(-3.0e38):#x}
    v_mov_b32 v{vM+1}, {f2u(-3.0e38):#x}
    """)
    for i in range(32):
        a(f"v_mov_b32 v{vO+i}, 0")
    L_fl = 'L_att_fbloop'
    a.label(L_fl)
    a(f"""
    s_add_u32 s{sT}, s{sKoff}, {VF-KF}
    buffer_load_dwordx4 v[{vK}:{vK+3}], v{vL16}, s[{sWS}:{sWS+3}], s{sKoff} offen
    s_mov_b64 exec, s[{sVm}:{sVm+1}]
    buffer_load_dwordx4 v[{vV}:{vV+3}], v{vVl}, s[{sWS}:{sWS+3}], s{sT} offen
    buffer_load_dwordx4 v[{vV+4}:{vV+7}], v{vVl}, s[{sWS}:{sWS+3}], s{sT} offen offset:512
    s_mov_b64 exec, -1
    s_waitcnt vmcnt(0)
    """)
    for qa in range(2):
        S = vS + 16 * qa
        o = vO + 16 * qa
        mfma(a, S, vK, vQ + 4 * qa, None)
        a.nop(20)
        a(f"v_max3_f32 v{vMx}, v{S}, v{S+1}, v{S+2}")
        for i in range(3, 15, 2):
            a(f"v_max3_f32 v{vMx}, v{vMx}, v{S+i}, v{S+i+1}")
        a(f"""
        v_max3_f32 v{vMx}, v{vMx}, v{S+15}, v{vM+qa}
        v_mov_b32 v{vMx+1}, v{vMx}
        s_nop 1
        v_permlane32_swap_b32 v{vMx}, v{vMx+1}
        s_nop 1
        v_max_f32 v{vMx}, v{vMx}, v{vMx+1}
        v_sub_f32 v{vAl}, v{vM+qa}, v{vMx}
        v_exp_f32 v{vAl}, v{vAl}
        v_mov_b32 v{vM+qa}, v{vMx}
        """)
        for i in range(16):
            a(f"v_mul_f32 v{o+i}, v{o+i}, v{vAl}")
        for i in range(16):
            a(f"v_sub_f32 v{S+i}, v{S+i}, v{vMx}")
        for i in range(16):
            a(f"v_exp_f32 v{S+i}, v{S+i}")
        a("s_nop 0")
        for d in range(8):
            a(f"v_cvt_pk_bf16_f32 v{vP+d}, v{S+2*d}, v{S+2*d+1}")
        a("s_nop 1")
        mfma(a, o, vV, vP, o)
        mfma(a, o, vV + 4, vP + 4, o)
        a.nop(20)
    a(f"""
    s_add_u32 s{sKoff}, s{sKoff}, 1024
    s_add_u32 s{sC}, s{sC}, 1
    s_cmp_lt_u32 s{sC}, 64
    s_cbranch_scc1 {L_fl}
    s_branch {L_fin}
    """)


def role_spatial(a, opts):
    sWS, sWsp, sBsp, sDbg = 8, 12, 16, 20
    sWave, sTb, sFb, sT, sT2, sWt, sWf, sMask = 24, 25, 26, 27, 28, 29, 30, 31
    sWoff, sZoff, sLW, sLZ, sIt, sTT = 32, 33, 34, 35, 36, 37
    vLane, vT1, vT2, vT3, vL16 = 1, 2, 3, 4, 5
    vWo = 6
    vZo = 8
    vWa = 10
    vZa = 14
    vNM, vRI = 16, 18
    vSt = 20
    vX = 36
    vTt = 52
    vF = 64
    vAcc = 96
    vZ1 = 128
    vBs = 144
    vPk = 148

    a.c("==== spatial role")
    a(f"""
    s_and_b32 s{sT}, s3, 7
    s_lshr_b32 s{sT2}, s3, 3
    s_lshr_b32 s{sTb}, s{sT}, 1
    s_lshl_b32 s{sTb}, s{sTb}, 2
    s_and_b32 s{sFb}, s{sT2}, 3
    s_add_u32 s{sTb}, s{sTb}, s{sFb}
    s_and_b32 s{sFb}, s{sT}, 1
    s_mul_i32 s{sFb}, s{sFb}, 7
    s_lshr_b32 s{sT2}, s{sT2}, 2
    s_add_u32 s{sFb}, s{sFb}, s{sT2}
    s_and_b32 s{sWt}, s{sWave}, 1
    s_lshr_b32 s{sWf}, s{sWave}, 1
    s_mov_b32 s{sMask}, 0xffff0000
    v_lshlrev_b32 v{vL16}, 4, v{vLane}
    """)
    a.c("normalise: tile tt = 4*tb + w")
    a(f"""
    s_lshl_b32 s{sTT}, s{sTb}, 2
    s_add_u32 s{sTT}, s{sTT}, s{sWave}
    v_and_b32 v{vT1}, 31, v{vLane}
    v_lshlrev_b32 v{vT1}, 3, v{vT1}
    s_lshl_b32 s{sT}, s{sTT}, 8
    s_add_u32 s{sT}, s{sT}, {ST}
    """)
    for u in range(7):
        a(f"buffer_load_dwordx2 v[{vSt+2*u}:{vSt+2*u+1}], v{vT1}, s[{sWS}:{sWS+3}], s{sT} offen")
        if u < 6:
            a(f"s_add_u32 s{sT}, s{sT}, 16384")
    a(f"""
    s_mul_i32 s{sT2}, s{sTT}, 57344
    s_lshl_b32 s{sT}, s{sFb}, 12
    s_add_u32 s{sT2}, s{sT2}, s{sT}
    s_add_u32 s{sT}, s{sT2}, {Z2F}
    """)
    for g in range(4):
        a(f"buffer_load_dwordx4 v[{vX+4*g}:{vX+4*g+3}], v{vL16}, s[{sWS}:{sWS+3}], s{sT} offen offset:{1024*g}")
    a.c("DMA lane offsets")
    a(f"""
    v_lshrrev_b32 v{vT1}, 3, v{vLane}
    v_and_b32 v{vT2}, 7, v{vLane}
    v_lshrrev_b32 v{vT3}, 4, v{vLane}
    v_xor_b32 v{vT3}, v{vT2}, v{vT3}
    v_lshlrev_b32 v{vWo}, 4, v{vT3}
    v_lshl_add_u32 v{vWo}, v{vT1}, 12, v{vWo}
    v_xor_b32 v{vWo+1}, 64, v{vWo}
    v_bfe_u32 v{vT3}, v{vLane}, 4, 1
    v_lshlrev_b32 v{vT3}, 2, v{vT3}
    v_xor_b32 v{vT3}, v{vT2}, v{vT3}
    v_lshlrev_b32 v{vT3}, 9, v{vT3}
    v_lshl_add_u32 v{vZo}, v{vT1}, 4, v{vT3}
    """)
    a(f"""
    s_lshl_b32 s{sWoff}, s{sTb}, 7
    s_lshl_b32 s{sT}, s{sWave}, 5
    s_add_u32 s{sWoff}, s{sWoff}, s{sT}
    s_lshl_b32 s{sWoff}, s{sWoff}, 12
    s_mul_i32 s{sZoff}, s{sWf}, 57344
    s_lshl_b32 s{sT}, s{sFb}, 12
    s_add_u32 s{sZoff}, s{sZoff}, s{sT}
    s_lshl_b32 s{sT}, s{sWt}, 8
    s_add_u32 s{sZoff}, s{sZoff}, s{sT}
    s_add_u32 s{sZoff}, s{sZoff}, {Z2N}
    s_lshl_b32 s{sLW}, s{sWave}, 12
    s_lshl_b32 s{sLZ}, s{sWave}, 11
    s_add_u32 s{sLZ}, s{sLZ}, 16384
    """)

    def dma_w(st):
        for q in range(4):
            a(f"s_add_u32 m0, s{sLW}, {st*24576 + q*1024}")
            if q == 0:
                a("s_nop 0")
                a(f"buffer_load_dwordx4 v{vWo}, s[{sWsp}:{sWsp+3}], s{sWoff} offen lds")
            else:
                a(f"s_add_u32 s{sT}, s{sWoff}, {q*8*4096}")
                a(f"buffer_load_dwordx4 v{vWo+q%2}, s[{sWsp}:{sWsp+3}], s{sT} offen lds")
        a(f"s_add_u32 s{sWoff}, s{sWoff}, 128")

    def dma_z(st):
        a(f"""
        s_add_u32 m0, s{sLZ}, {st*24576}
        s_add_u32 s{sT}, s{sZoff}, 128
        buffer_load_dwordx4 v{vZo}, s[{sWS}:{sWS+3}], s{sZoff} offen sc1 lds
        s_add_u32 m0, s{sLZ}, {st*24576+1024}
        s_add_u32 s{sZoff}, s{sZoff}, {2*57344}
        buffer_load_dwordx4 v{vZo}, s[{sWS}:{sWS+3}], s{sT} offen sc1 lds
        """)

    dma_w(0)
    dma_w(1)
    a.c("frag read addresses")
    a(f"""
    v_and_b32 v{vT1}, 31, v{vLane}
    v_lshrrev_b32 v{vT2}, 5, v{vLane}
    v_bfe_u32 v{vT3}, v{vLane}, 1, 3
    v_xor_b32 v{vT3}, v{vT3}, v{vT2}
    s_lshl_b32 s{sT}, s{sWt}, 13
    v_lshl_add_u32 v{vT1}, v{vT1}, 7, s{sT}
    """)
    for ks in range(4):
        a(f"v_xor_b32 v{vWa+ks}, {2*ks}, v{vT3}")
        a(f"v_lshl_add_u32 v{vWa+ks}, v{vWa+ks}, 4, v{vT1}")
    a(f"""
    v_bfe_u32 v{vT1}, v{vLane}, 2, 2
    v_lshl_add_u32 v{vT2}, v{vT2}, 3, v{vT1}
    v_lshlrev_b32 v{vT2}, 7, v{vT2}
    v_bfe_u32 v{vT3}, v{vLane}, 4, 1
    v_lshlrev_b32 v{vT3}, 1, v{vT3}
    v_and_b32 v{vZa}, 1, v{vLane}
    v_add_u32 v{vT3}, v{vT3}, v{vZa}
    s_lshl_b32 s{sT}, s{sWf}, 2
    v_add_u32 v{vT3}, s{sT}, v{vT3}
    v_bfe_u32 v{vZa}, v{vLane}, 3, 1
    v_lshlrev_b32 v{vZa}, 2, v{vZa}
    v_xor_b32 v{vT3}, v{vT3}, v{vZa}
    v_lshl_add_u32 v{vT2}, v{vT3}, 4, v{vT2}
    v_bfe_u32 v{vT3}, v{vLane}, 1, 1
    v_lshl_add_u32 v{vT2}, v{vT3}, 3, v{vT2}
    v_add_u32 v{vZa}, 16384, v{vT2}
    """)
    a("s_waitcnt vmcnt(12)")
    for u in range(1, 7):
        a(f"v_add_f32 v{vSt}, v{vSt}, v{vSt+2*u}")
        a(f"v_add_f32 v{vSt+1}, v{vSt+1}, v{vSt+2*u+1}")
    ln_scalars(a, vSt, vSt + 1, vNM, vRI, vSt + 2, sMask, 896)
    a("s_waitcnt vmcnt(8)")
    a(f"s_add_u32 s{sT2}, s{sT2}, {Z2N}")
    for g in range(4):
        ln_apply4(a, vX + 4 * g, vTt, vNM, vRI, sMask)
        a(f"buffer_store_dwordx4 v[{vX+4*g}:{vX+4*g+3}], v{vL16}, s[{sWS}:{sWS+3}], s{sT2} offen offset:{1024*g} sc0 sc1")
    L_np = 'L_sp_nopoll'
    L_poll = 'L_sp_poll'
    a(f"""
    s_waitcnt vmcnt(0)
    s_barrier
    s_cmp_lg_u32 s{sWave}, 0
    s_cbranch_scc1 {L_np}
    s_lshl_b32 s{sT}, s{sFb}, 2
    v_mov_b32 v{vT1}, 1
    s_mov_b64 exec, 1
    buffer_atomic_add v{vT1}, off, s[{sDbg}:{sDbg+3}], s{sT} sc1
    """)
    a.label(L_poll)
    a(f"""
    buffer_load_dword v{vT2}, off, s[{sDbg}:{sDbg+3}], s{sT} sc1
    s_waitcnt vmcnt(0)
    v_readfirstlane_b32 s{sT2}, v{vT2}
    s_nop 3
    s_cmp_ge_u32 s{sT2}, 16
    s_cbranch_scc1 {L_np}_x
    s_sleep 2
    s_branch {L_poll}
    """)
    a.label(L_np + '_x')
    a("s_mov_b64 exec, -1")
    a.label(L_np)
    a("s_barrier")
    dma_z(0)
    dma_z(1)
    for i in range(32):
        a(f"v_mov_b32 v{vAcc+i}, 0")

    def reads(st, ks):
        f = vF + 12 * (ks % 2)
        base = st * 24576
        a(f"ds_read_b128 v[{f}:{f+3}], v{vWa+ks} offset:{base}")
        a(f"ds_read_b128 v[{f+4}:{f+7}], v{vWa+ks} offset:{base+4096}")
        a(f"ds_read_b64_tr_b16 v[{f+8}:{f+9}], v{vZa} offset:{base + (16*ks)*128}")
        a(f"ds_read_b64_tr_b16 v[{f+10}:{f+11}], v{vZa} offset:{base + (16*ks+4)*128}")

    def body(st, wait, dma):
        a(f"s_waitcnt vmcnt({wait})\ns_barrier")
        reads(st, 0)
        if dma:
            dma_w((st + 2) % 3)
            dma_z((st + 2) % 3)
        for ks in range(4):
            if ks < 3:
                reads(st, ks + 1)
                a("s_waitcnt lgkmcnt(4)")
            else:
                a("s_waitcnt lgkmcnt(0)")
            f = vF + 12 * (ks % 2)
            mfma(a, vAcc, f + 8, f, vAcc)
            mfma(a, vAcc + 16, f + 8, f + 4, vAcc + 16)

    body(0, 2, True)
    body(1, 6, True)
    a(f"s_mov_b32 s{sIt}, 9")
    L_l = 'L_sp_loop'
    a.label(L_l)
    body(2, 6, True)
    body(0, 6, True)
    body(1, 6, True)
    a(f"""
    s_sub_u32 s{sIt}, s{sIt}, 1
    s_cmp_lg_u32 s{sIt}, 0
    s_cbranch_scc1 {L_l}
    """)
    body(2, 6, True)
    body(0, 6, False)
    a.c("epilogue loads: z1, b")
    a(f"""
    s_lshl_b32 s{sTT}, s{sTb}, 2
    s_lshl_b32 s{sT}, s{sWt}, 1
    s_add_u32 s{sTT}, s{sTT}, s{sT}
    s_lshl_b32 s{sT2}, s{sFb}, 2
    s_lshl_b32 s{sT}, s{sWf}, 1
    s_add_u32 s{sT2}, s{sT2}, s{sT}
    s_lshl_b32 s{sT2}, s{sT2}, 10
    s_mul_i32 s{sWoff}, s{sTT}, 57344
    s_add_u32 s{sWoff}, s{sWoff}, s{sT2}
    s_add_u32 s{sWoff}, s{sWoff}, {Z1F}
    s_mul_i32 s{sZoff}, s{sTT}, 90112
    s_add_u32 s{sZoff}, s{sZoff}, s{sT2}
    s_add_u32 s{sZoff}, s{sZoff}, {AF + 32*1024}
    v_and_b32 v{vT1}, 31, v{vLane}
    v_lshlrev_b32 v{vT1}, 1, v{vT1}
    s_lshl_b32 s{sT}, s{sTT}, 6
    """)
    body(1, 0, False)
    a(f"""
    buffer_load_ushort v{vBs}, v{vT1}, s[{sBsp}:{sBsp+3}], s{sT} offen
    buffer_load_ushort v{vBs+1}, v{vT1}, s[{sBsp}:{sBsp+3}], s{sT} offen offset:64
    s_add_u32 s{sT}, s{sWoff}, 57344
    buffer_load_dwordx4 v[{vZ1}:{vZ1+3}], v{vL16}, s[{sWS}:{sWS+3}], s{sWoff} offen
    buffer_load_dwordx4 v[{vZ1+4}:{vZ1+7}], v{vL16}, s[{sWS}:{sWS+3}], s{sWoff} offen offset:1024
    buffer_load_dwordx4 v[{vZ1+8}:{vZ1+11}], v{vL16}, s[{sWS}:{sWS+3}], s{sT} offen
    buffer_load_dwordx4 v[{vZ1+12}:{vZ1+15}], v{vL16}, s[{sWS}:{sWS+3}], s{sT} offen offset:1024
    s_waitcnt vmcnt(0)
    v_lshlrev_b32 v{vBs}, 16, v{vBs}
    v_lshlrev_b32 v{vBs+1}, 16, v{vBs+1}
    """)
    a.nop(16)
    for i2 in range(2):
        for e in range(2):
            g = 2 * i2 + e
            acc = vAcc + 8 * g
            for d in range(4):
                z = vZ1 + 4 * g + d
                a(f"""
                v_lshlrev_b32 v{vTt+2*d}, 16, v{z}
                v_and_b32 v{vTt+2*d+1}, s{sMask}, v{z}
                v_add_f32 v{acc+2*d}, v{acc+2*d}, v{vBs+i2}
                v_add_f32 v{acc+2*d+1}, v{acc+2*d+1}, v{vBs+i2}
                v_mul_f32 v{acc+2*d}, v{acc+2*d}, v{vTt+2*d}
                v_mul_f32 v{acc+2*d+1}, v{acc+2*d+1}, v{vTt+2*d+1}
                v_cvt_pk_bf16_f32 v{vPk+4*g+d}, v{acc+2*d}, v{acc+2*d+1}
                """)
            a(f"s_add_u32 s{sT}, s{sZoff}, {90112*i2}")
            a(f"buffer_store_dwordx4 v[{vPk+4*g}:{vPk+4*g+3}], v{vL16}, s[{sWS}:{sWS+3}], s{sT} offen offset:{1024*e}")
    a("s_endpgm")


def role_wt(a, opts):
    sWS = 8
    sWw = 12
    sWave, sKg, sT, sT2, sL = 24, 25, 26, 27, 28
    vLane, vT1, vT2, vT3, vL16, vTa = 1, 2, 3, 4, 5, 6
    vD = 16
    a.c("==== weight transpose role")
    a(f"""
    s_lshl_b32 s{sKg}, s3, 2
    s_add_u32 s{sKg}, s{sKg}, s{sWave}
    s_cmp_ge_u32 s{sKg}, 88
    s_cbranch_scc1 L_k2_end
    s_cmp_lt_u32 s{sKg}, 32
    s_cselect_b32 s{sWw}, s44, s46
    s_cselect_b32 s{sWw+1}, s45, s47
    s_mov_b32 s{sWw+2}, {896*1024}
    s_cmov_b32 s{sWw+2}, {512*1024}
    s_cselect_b32 s{sT}, 0, 32
    s_and_b32 s{sWw+1}, s{sWw+1}, 0xffff
    s_mov_b32 s{sWw+3}, 0x20000
    s_sub_u32 s{sT}, s{sKg}, s{sT}
    s_lshl_b32 s{sT}, s{sT}, 14
    s_lshl_b32 s{sL}, s{sWave}, 14
    v_lshlrev_b32 v{vL16}, 4, v{vLane}
    """)
    for r in range(16):
        if r % 4 == 0:
            a(f"s_add_u32 m0, s{sL}, {r*1024}")
            a(f"s_add_u32 s{sT2}, s{sT}, {r*1024}")
        a(f"buffer_load_dwordx4 v{vL16}, s[{sWw}:{sWw+3}], s{sT2} offen offset:{(r%4)*1024} lds")
    a(f"""
    v_lshrrev_b32 v{vT1}, 5, v{vLane}
    v_bfe_u32 v{vT2}, v{vLane}, 2, 2
    v_lshl_add_u32 v{vT1}, v{vT1}, 2, v{vT2}
    v_lshlrev_b32 v{vT1}, 10, v{vT1}
    v_bfe_u32 v{vT2}, v{vLane}, 4, 1
    v_lshl_add_u32 v{vT1}, v{vT2}, 5, v{vT1}
    v_and_b32 v{vT2}, 1, v{vLane}
    v_lshl_add_u32 v{vT1}, v{vT2}, 4, v{vT1}
    v_bfe_u32 v{vT2}, v{vLane}, 1, 1
    v_lshl_add_u32 v{vT1}, v{vT2}, 3, v{vT1}
    v_add_u32 v{vTa}, s{sL}, v{vT1}
    s_lshl_b32 s{sT}, s{sKg}, 10
    s_add_u32 s{sT}, s{sT}, {WF}
    s_waitcnt vmcnt(0)
    """)
    for nt in range(16):
        a(f"ds_read_b64_tr_b16 v[{vD+4*nt}:{vD+4*nt+1}], v{vTa} offset:{64*nt}")
        a(f"ds_read_b64_tr_b16 v[{vD+4*nt+2}:{vD+4*nt+3}], v{vTa} offset:{64*nt+8192}")
    a("s_waitcnt lgkmcnt(0)")
    for nt in range(16):
        a(f"buffer_store_dwordx4 v[{vD+4*nt}:{vD+4*nt+3}], v{vL16}, s[{sWS}:{sWS+3}], s{sT} offen")
        a(f"s_add_u32 s{sT}, s{sT}, 90112")
    a("s_endpgm")


def gen_k2(a, which):
    opts = {}
    for w in which:
        if w.startswith('prio'):
            opts['prio_attn'] = int(w[4:])
        if w == 'fb':
            opts['force_fallback'] = True
    name = 'k2_kernel'
    a.kernel_begin(name)
    a(f"""
    s_cmp_ge_u32 s2, 512
    s_cbranch_scc1 L_k2_end
    s_load_dwordx2 s[4:5], s[0:1], 80
    s_load_dwordx4 s[48:51], s[0:1], 40
    s_load_dwordx2 s[52:53], s[0:1], 72
    s_load_dwordx2 s[44:45], s[0:1], 16
    s_load_dwordx2 s[46:47], s[0:1], 56
    v_lshrrev_b32 v2, 6, v0
    v_and_b32 v1, 63, v0
    s_nop 0
    v_readfirstlane_b32 s24, v2
    s_waitcnt lgkmcnt(0)
    """)
    a.srd(8, 4, WS_SIZE)
    a.srd(12, 48, 2048 * 4096)
    a.srd(16, 50, 4096)
    a.srd(20, 52, 256)
    a(f"""
    s_cmp_lt_u32 s2, 256
    s_cbranch_scc1 L_k2_attn
    s_cmp_lt_u32 s2, 480
    s_cbranch_scc1 L_k2_sp
    s_sub_u32 s3, s2, 480
    """)
    role_wt(a, opts)
    a.label('L_k2_sp')
    a("s_sub_u32 s3, s2, 256")
    role_spatial(a, opts)
    a.label('L_k2_attn')
    role_attn(a, opts)
    a.label('L_k2_end')
    a("s_endpgm")
    a.kernel_end(name, 256, 64)
    return ["; @launch kernel=k2_kernel grid=(512,1,1) block=(256,1,1) lds=81920"]
```

```python
from asmlib import *
from gen_k1 import *


def gen_k3(a):
    name = 'k3_kernel'
    a.kernel_begin(name)
    sWS, sX, sO = 8, 12, 16
    sWave, sTb, sNb, sT, sT2, sA, sB = 24, 25, 26, 27, 28, 29, 30
    vLane, vT1, vT2, vL16, vOut, vLw, vLr = 1, 2, 3, 4, 5, 6, 7
    vXr = 8
    vPk = 16
    vAcc = 32
    vR = 96
    NS = 22
    def areg(s, i):
        return f"v[{80+8*s+4*i}:{80+8*s+4*i+3}]"
    def breg(s, i):
        return f"a[{8*s+4*i}:{8*s+4*i+3}]"
    vAcc = 16
    vPk = 8
    a(f"""
    s_cmp_ge_u32 s2, 256
    s_cbranch_scc1 L_k3_end
    s_load_dwordx2 s[4:5], s[0:1], 80
    s_load_dwordx2 s[6:7], s[0:1], 0
    s_load_dwordx2 s[20:21], s[0:1], 64
    v_lshrrev_b32 v2, 6, v0
    v_and_b32 v1, 63, v0
    s_and_b32 s{sT}, s2, 7
    v_readfirstlane_b32 s{sWave}, v2
    s_lshr_b32 s{sT2}, s2, 3
    s_lshl_b32 s{sTb}, s{sT}, 2
    s_lshr_b32 s{sT}, s{sT2}, 3
    s_add_u32 s{sTb}, s{sTb}, s{sT}
    s_and_b32 s{sNb}, s{sT2}, 7
    v_lshlrev_b32 v{vL16}, 4, v{vLane}
    s_mul_i32 s{sT}, s{sWave}, {NS*1024}
    s_mul_i32 s{sA}, s{sTb}, {2*90112}
    s_add_u32 s{sA}, s{sA}, s{sT}
    s_add_u32 s{sA}, s{sA}, {AF}
    s_mul_i32 s{sB}, s{sNb}, {2*90112}
    s_add_u32 s{sB}, s{sB}, s{sT}
    s_add_u32 s{sB}, s{sB}, {WF}
    s_waitcnt lgkmcnt(0)
    """)
    a.srd(sWS, 4, WS_SIZE)
    a.srd(sX, 6, 2048 * 1024)
    a.srd(sO, 20, 2048 * 1024)
    sA1, sB1 = 31, 32
    a(f"s_add_u32 s{sA1}, s{sA}, 90112\ns_add_u32 s{sB1}, s{sB}, 90112")
    for s in range(NS):
        if s and s % 4 == 0:
            a(f"""
            s_add_u32 s{sA}, s{sA}, 4096
            s_add_u32 s{sA1}, s{sA1}, 4096
            s_add_u32 s{sB}, s{sB}, 4096
            s_add_u32 s{sB1}, s{sB1}, 4096
            """)
        o = (s % 4) * 1024
        a(f"buffer_load_dwordx4 {areg(s,0)}, v{vL16}, s[{sWS}:{sWS+3}], s{sA} offen offset:{o}")
        a(f"buffer_load_dwordx4 {breg(s,0)}, v{vL16}, s[{sWS}:{sWS+3}], s{sB} offen offset:{o}")
        a(f"buffer_load_dwordx4 {areg(s,1)}, v{vL16}, s[{sWS}:{sWS+3}], s{sA1} offen offset:{o}")
        a(f"buffer_load_dwordx4 {breg(s,1)}, v{vL16}, s[{sWS}:{sWS+3}], s{sB1} offen offset:{o}")
    a(f"""
    s_and_b32 s{sT}, s{sWave}, 1
    s_lshl_b32 s{sT}, s{sT}, 5
    s_lshl_b32 s{sT2}, s{sTb}, 6
    s_add_u32 s{sT}, s{sT}, s{sT2}
    v_and_b32 v{vT1}, 31, v{vLane}
    v_add_u32 v{vT1}, s{sT}, v{vT1}
    v_lshlrev_b32 v{vT1}, 10, v{vT1}
    v_lshrrev_b32 v{vT2}, 5, v{vLane}
    v_lshl_add_u32 v{vT1}, v{vT2}, 4, v{vT1}
    s_lshr_b32 s{sT}, s{sWave}, 1
    s_lshl_b32 s{sT}, s{sT}, 6
    s_lshl_b32 s{sT2}, s{sNb}, 7
    s_add_u32 s{sT}, s{sT}, s{sT2}
    v_add_u32 v{vOut}, s{sT}, v{vT1}
    buffer_load_dwordx4 v[{vXr}:{vXr+3}], v{vOut}, s[{sX}:{sX+3}], 0 offen
    buffer_load_dwordx4 v[{vXr+4}:{vXr+7}], v{vOut}, s[{sX}:{sX+3}], 0 offen offset:32
    """)
    total = 4 * NS + 2
    for s in range(NS):
        rem = total - 4 * (s + 1)
        a(f"s_waitcnt vmcnt({min(rem, 63)})")
        for nt in range(2):
            for tt in range(2):
                D = vAcc + 16 * (2 * nt + tt)
                C = f"v[{D}:{D+15}]" if s else "0"
                a(f"v_mfma_f32_32x32x16_bf16 v[{D}:{D+15}], {breg(s,nt)}, {areg(s,tt)}, {C}")
    a.nop(20)
    a(f"""
    s_lshl_b32 s{sT}, s{sWave}, 12
    v_add_u32 v{vLw}, s{sT}, v{vL16}
    s_lshl_b32 s{sT}, s{sWave}, 14
    v_add_u32 v{vLr}, s{sT}, v{vL16}
    """)
    for T in range(4):
        for q in range(4):
            a(f"ds_write_b128 v{vLw}, v[{vAcc+16*T+4*q}:{vAcc+16*T+4*q+3}] offset:{T*16384+q*1024}")
    a("s_waitcnt lgkmcnt(0)\ns_barrier")
    R = 80
    for src in range(4):
        for q in range(4):
            a(f"ds_read_b128 v[{R+16*src+4*q}:{R+16*src+4*q+3}], v{vLr} offset:{src*4096+q*1024}")
    a("s_mov_b32 s33, 0xffff0000")
    a("s_waitcnt vmcnt(0) lgkmcnt(0)")
    for i in range(16):
        a(f"v_add_f32 v{R+i}, v{R+i}, v{R+16+i}")
        a(f"v_add_f32 v{R+32+i}, v{R+32+i}, v{R+48+i}")
    for i in range(16):
        a(f"v_add_f32 v{R+i}, v{R+i}, v{R+32+i}")
    for d in range(8):
        a(f"v_lshlrev_b32 v{R+16+2*d}, 16, v{vXr+d}")
        a(f"v_and_b32 v{R+17+2*d}, s33, v{vXr+d}")
    for i in range(16):
        a(f"v_add_f32 v{R+i}, v{R+i}, v{R+16+i}")
    for d in range(8):
        a(f"v_cvt_pk_bf16_f32 v{R+32+d}, v{R+2*d}, v{R+2*d+1}")
    a(f"""
    buffer_store_dwordx4 v[{R+32}:{R+35}], v{vOut}, s[{sO}:{sO+3}], 0 offen
    buffer_store_dwordx4 v[{R+36}:{R+39}], v{vOut}, s[{sO}:{sO+3}], 0 offen offset:32
    """)
    a.label('L_k3_end')
    a("s_endpgm")
    a.kernel_end(name, 256 + 176, 64, accum=256)
    return ["; @launch kernel=k3_kernel grid=(256,1,1) block=(256,1,1) lds=65536"]
```

```python
import sys
from asmlib import *
import gen_k1
HEAD = open('parallel_sum__softmax_full_mha__mixer_gmlp__prompt.s.ref').read().split('; Override launch')[0]
def build(which, out):
    a = Asm()
    a.instr = 'instr' in which
    a.flags = set(which)
    launches = []
    if 'k1' in which:
        launches.append("; @launch kernel=k1_kernel grid=(224,1,1) block=(512,1,1) lds=163840")
        gen_k1.gen_k1(a)
    if 'k1b' in which:
        import gen_k1b
        launches += gen_k1b.gen_k1b(a)
    if 'k2' in which:
        import gen_k2
        launches += gen_k2.gen_k2(a, which)
    if 'k3' in which:
        import gen_k3
        launches += gen_k3.gen_k3(a)
    s = HEAD + '\n'.join(launches) + '\n.amdgcn_target "amdgcn-amd-amdhsa--gfx950"\n' + a.text()
    open(out, 'w').write(s)
if __name__ == '__main__':
    build(sys.argv[1].split(','), sys.argv[2])
```

```python
import struct


def f2u(x):
    return struct.unpack('<I', struct.pack('<f', x))[0]


def vr(a, n=1):
    return f"v{a}" if n == 1 else f"v[{a}:{a+n-1}]"


def ar(a, n=1):
    return f"a{a}" if n == 1 else f"a[{a}:{a+n-1}]"


def sr(a, n=1):
    return f"s{a}" if n == 1 else f"s[{a}:{a+n-1}]"


class Asm:
    def __init__(self):
        self.l = []
        self.uid = 0

    def __call__(self, s):
        for line in s.strip('\n').split('\n'):
            self.l.append('  ' + line.strip())

    def label(self, name):
        self.l.append(name + ':')

    def newlabel(self, base):
        self.uid += 1
        return f"L_{base}_{self.uid}"

    def c(self, s):
        self.l.append('  ; ' + s)

    def nop(self, n):
        while n > 0:
            k = min(n, 16)
            self.l.append(f"  s_nop {k-1}")
            n -= k

    def text(self):
        return '\n'.join(self.l) + '\n'

    def kernel_begin(self, name):
        self.l.append('.text')
        self.l.append(f'.globl {name}')
        self.l.append('.p2align 8')
        self.l.append(f'.type {name},@function')
        self.l.append(f'{name}:')

    def kernel_end(self, name, nvgpr, nsgpr=102, accum=None):
        accum = accum if accum is not None else (nvgpr + 3) // 4 * 4
        self.l.append(f'''.section .rodata,"a"
.p2align 6
.amdhsa_kernel {name}
  .amdhsa_next_free_vgpr {nvgpr}
  .amdhsa_next_free_sgpr {nsgpr}
  .amdhsa_accum_offset {accum}
  .amdhsa_group_segment_fixed_size 0
  .amdhsa_kernarg_size 88
  .amdhsa_user_sgpr_count 2
  .amdhsa_user_sgpr_kernarg_segment_ptr 1
  .amdhsa_system_sgpr_workgroup_id_x 1
.end_amdhsa_kernel''')

    def srd(self, d, base, nbytes):
        self(f"s_mov_b32 s{d}, s{base}")
        self(f"s_and_b32 s{d+1}, s{base+1}, 0xffff")
        self(f"s_mov_b32 s{d+2}, {nbytes:#x}")
        self(f"s_mov_b32 s{d+3}, 0x20000")


STAMP_BASE = 0x1C00000


def stamp(a, k):
    if getattr(a, 'instr', False):
        if 'clk' in a.flags:
            a(f"s_memtime s[{64+2*k}:{65+2*k}]")
        else:
            a(f"s_memrealtime s[{64+2*k}:{65+2*k}]")


def stamp_flush(a, kern, nst, wsptr, wave_sgpr, waves_per_wg, vt=250):
    if not getattr(a, 'instr', False):
        return
    a("s_waitcnt lgkmcnt(0)")
    a("s_mov_b64 exec, 1")
    a(f"s_mul_i32 s96, s2, {waves_per_wg}")
    a(f"s_add_u32 s96, s96, s{wave_sgpr}")
    a(f"s_lshl_b32 s96, s96, 5")
    a(f"s_add_u32 s96, s96, {STAMP_BASE + kern * 0x100000}")
    a(f"v_mov_b32 v{vt}, s96")
    for k in range(nst):
        a(f"v_mov_b32 v{vt+1}, s{64+2*k}")
        a(f"global_store_dword v{vt}, v{vt+1}, s[{wsptr}:{wsptr+1}] offset:{4*k}")
    a("s_mov_b64 exec, -1")
```

```python
from asmlib import *

QF = 0x000000
KF = 0x200000
VF = 0x400000
Z1F = 0x600000
Z2F = 0xA00000
Z2N = 0xE00000
AF = 0x1200000
ST = 0x1800000
WF = 0x1900000
WS_SIZE = 0x1B00000

QSCALE = 0.25 * 1.4426950408889634
GC1 = -2.0 * 1.4426950408889634 * 0.7978845608028654
GC2 = GC1 * 0.044715


def gen_k1(a, name='k1_kernel'):
    a.kernel_begin(name)
    L_end = 'L_k1_end'
    sX, sW, sWS = 12, 16, 20
    sWave, sCb, sRb, sWq, sWm, sRS, sCur, sRS32, sRS4, sLdsW, sT, sAct = 24, 25, 26, 27, 28, 29, 30, 31, 32, 33, 34, 35
    sOnes, sMask, sT2, sTT, sBase = 36, 37, 38, 39, 40
    vLane, vT1, vT2, vT3 = 1, 2, 3, 4
    vXoff, vWoff, vLdsWr, vAE, vAO = 5, 6, 7, 8, 9
    vTr = 10
    vL16, vVoff = 14, 15
    vB = 32
    vAcc = 64
    vA = 128

    a(f"""
    s_cmp_ge_u32 s2, 224
    s_cbranch_scc1 {L_end}
    s_load_dwordx4 s[4:7], s[0:1], 0
    s_load_dwordx2 s[8:9], s[0:1], 32
    s_load_dwordx2 s[10:11], s[0:1], 80
    """)
    stamp(a, 0)
    a(f"""
    s_and_b32 s{sT}, s2, 7
    s_mul_i32 s{sT}, s{sT}, 28
    s_lshr_b32 s{sT2}, s2, 3
    s_add_u32 s{sT}, s{sT}, s{sT2}
    s_lshr_b32 s{sCb}, s{sT}, 4
    s_and_b32 s{sRb}, s{sT}, 15
    v_lshrrev_b32 v{vT1}, 6, v0
    v_and_b32 v{vLane}, 63, v0
    s_mov_b32 s{sOnes}, 0x3f803f80
    v_readfirstlane_b32 s{sWave}, v{vT1}
    s_mov_b32 s{sMask}, 0xffff0000
    s_nop 2
    s_lshr_b32 s{sWq}, s{sWave}, 2
    s_and_b32 s{sWm}, s{sWave}, 3
    """)
    a.c("active = !(wq==1 && cb>=12)")
    a(f"""
    s_cmp_ge_u32 s{sCb}, 12
    s_cselect_b32 s{sT}, 1, 0
    s_and_b32 s{sT}, s{sT}, s{sWq}
    s_xor_b32 s{sAct}, s{sT}, 1
    s_cmp_eq_u32 s{sWq}, 0
    s_mov_b32 s{sRS}, 3072
    s_cmov_b32 s{sRS}, 3584
    s_lshl_b32 s{sRS32}, s{sRS}, 5
    s_lshl_b32 s{sRS4}, s{sRS}, 2
    s_lshl_b32 s{sCur}, s{sRS}, 3
    s_mul_i32 s{sCur}, s{sCur}, s{sWm}
    s_lshl_b32 s{sT}, s{sCb}, 8
    s_add_u32 s{sCur}, s{sCur}, s{sT}
    s_lshl_b32 s{sLdsW}, s{sWq}, 13
    s_lshl_b32 s{sT}, s{sWm}, 11
    s_add_u32 s{sLdsW}, s{sLdsW}, s{sT}
    s_lshl_b32 s{sTT}, s{sRb}, 2
    s_add_u32 s{sTT}, s{sTT}, s{sWm}
    """)
    a.c("W DMA lane offset: (L/16)*rowstride + ((L%16) ^ (4*(L/16)))*16")
    a(f"""
    v_lshrrev_b32 v{vT1}, 4, v{vLane}
    v_and_b32 v{vT2}, 15, v{vLane}
    v_lshlrev_b32 v{vT3}, 2, v{vT1}
    v_xor_b32 v{vT2}, v{vT2}, v{vT3}
    v_lshlrev_b32 v{vT2}, 4, v{vT2}
    v_mad_u32_u24 v{vWoff}, v{vT1}, s{sRS}, v{vT2}
    """)
    a.c("x load offset: (rb*128 + 16*wave + L/4)*1024 + (L%4)*16")
    a(f"""
    s_lshl_b32 s{sT}, s{sRb}, 7
    s_lshl_b32 s{sT2}, s{sWave}, 4
    s_add_u32 s{sT}, s{sT}, s{sT2}
    v_lshrrev_b32 v{vT1}, 2, v{vLane}
    v_add_u32 v{vT2}, s{sT}, v{vT1}
    v_lshlrev_b32 v{vT2}, 10, v{vT2}
    v_and_b32 v{vT3}, 3, v{vLane}
    v_lshl_add_u32 v{vXoff}, v{vT3}, 4, v{vT2}
    """)
    a.c("LDS write addr: (wave/2)*32768 + c4*512 + ((16*(wave%2) + L/4) ^ (2*c4))*16")
    a(f"""
    s_and_b32 s{sT}, s{sWave}, 1
    s_lshl_b32 s{sT}, s{sT}, 4
    v_add_u32 v{vT1}, s{sT}, v{vT1}
    v_lshlrev_b32 v{vT2}, 1, v{vT3}
    v_xor_b32 v{vT1}, v{vT1}, v{vT2}
    v_lshlrev_b32 v{vT1}, 4, v{vT1}
    v_lshl_add_u32 v{vT1}, v{vT3}, 9, v{vT1}
    s_lshr_b32 s{sT}, s{sWave}, 1
    s_lshl_b32 s{sT}, s{sT}, 15
    v_add_u32 v{vLdsWr}, s{sT}, v{vT1}
    s_waitcnt lgkmcnt(0)
    """)
    a.srd(sX, 4, 2048 * 1024)
    a.srd(sWS, 10, WS_SIZE)
    a(f"""
    s_cmp_eq_u32 s{sWq}, 0
    s_cselect_b32 s{sW}, s8, s6
    s_cselect_b32 s{sW+1}, s9, s7
    s_mov_b32 s{sW+2}, {512*3072}
    s_cmov_b32 s{sW+2}, {512*3584}
    s_and_b32 s{sW+1}, s{sW+1}, 0xffff
    s_mov_b32 s{sW+3}, 0x20000
    """)

    def slot(j):
        return (j + 8) % 10

    def dma_chunk(j):
        a(f"""
        s_add_u32 m0, s{sLdsW}, {slot(j)*16384}
        s_add_u32 s{sT}, s{sCur}, s{sRS4}
        buffer_load_dwordx4 v{vWoff}, s[{sW}:{sW+3}], s{sCur} offen lds
        s_add_u32 m0, s{sLdsW}, {slot(j)*16384+1024}
        s_add_u32 s{sCur}, s{sCur}, s{sRS32}
        buffer_load_dwordx4 v{vWoff}, s[{sW}:{sW+3}], s{sT} offen lds
        """)

    L_nodma0 = 'L_k1_nodma0'
    a(f"""
    s_cmp_eq_u32 s{sAct}, 0
    s_cbranch_scc1 {L_nodma0}
    """)
    dma_chunk(0)
    dma_chunk(1)
    a.label(L_nodma0)
    a.c("x loads")
    for i in range(16):
        a(f"buffer_load_dwordx4 v[{vAcc+4*i}:{vAcc+4*i+3}], v{vXoff}, s[{sX}:{sX+3}], 0 offen offset:{64*i}")
    a.c("address regs for later phases (while loads fly)")
    a(f"""
    v_lshrrev_b32 v{vT1}, 5, v{vLane}
    v_and_b32 v{vT2}, 31, v{vLane}
    v_lshlrev_b32 v{vT3}, 1, v{vT1}
    v_xor_b32 v{vT2}, v{vT2}, v{vT3}
    v_lshlrev_b32 v{vAE}, 4, v{vT2}
    v_xor_b32 v{vT2}, 4, v{vT2}
    v_lshlrev_b32 v{vAO}, 4, v{vT2}
    s_lshl_b32 s{sT}, s{sWm}, 15
    v_lshl_add_u32 v{vT1}, v{vT1}, 9, s{sT}
    v_add_u32 v{vAE}, v{vAE}, v{vT1}
    v_add_u32 v{vAO}, v{vAO}, v{vT1}
    """)
    a(f"""
    v_lshrrev_b32 v{vT1}, 5, v{vLane}
    v_bfe_u32 v{vT2}, v{vLane}, 2, 2
    v_lshl_add_u32 v{vT1}, v{vT1}, 3, v{vT2}
    v_lshlrev_b32 v{vT1}, 8, v{vT1}
    v_bfe_u32 v{vT3}, v{vLane}, 4, 1
    v_lshl_add_u32 v{vT1}, v{vT3}, 5, v{vT1}
    v_and_b32 v{vT3}, 3, v{vLane}
    v_lshl_add_u32 v{vT1}, v{vT3}, 3, v{vT1}
    s_lshl_b32 s{sT}, s{sWq}, 13
    v_add_u32 v{vT1}, s{sT}, v{vT1}
    """)
    for ct in range(4):
        a(f"""
        v_xor_b32 v{vT3}, {ct}, v{vT2}
        v_lshl_add_u32 v{vTr+ct}, v{vT3}, 6, v{vT1}
        """)
    a(f"""
    v_lshlrev_b32 v{vL16}, 4, v{vLane}
    v_bfe_u32 v{vT1}, v{vLane}, 4, 1
    v_lshlrev_b32 v{vT1}, 16, v{vT1}
    v_lshrrev_b32 v{vT2}, 5, v{vLane}
    v_lshl_add_u32 v{vT1}, v{vT2}, 8, v{vT1}
    v_and_b32 v{vT2}, 15, v{vLane}
    v_lshl_add_u32 v{vVoff}, v{vT2}, 4, v{vT1}
    """)
    vS, vQ = 16, 20
    for d in range(4):
        a(f"v_mov_b32 v{vS+d}, 0\nv_mov_b32 v{vQ+d}, 0")
    for i in range(16):
        if i % 2 == 0:
            a(f"s_waitcnt vmcnt({14-i})")
        for d in range(4):
            x = vAcc + 4 * i + d
            a(f"v_dot2c_f32_bf16 v{vS+d}, s{sOnes}, v{x}")
            a(f"v_dot2c_f32_bf16 v{vQ+d}, v{x}, v{x}")
    a.nop(3)
    stamp(a, 1)
    vNM, vRI = 24, 26
    a(f"""
    v_add_f32 v{vS}, v{vS}, v{vS+1}
    v_add_f32 v{vS+2}, v{vS+2}, v{vS+3}
    v_add_f32 v{vQ}, v{vQ}, v{vQ+1}
    v_add_f32 v{vQ+2}, v{vQ+2}, v{vQ+3}
    v_add_f32 v{vS}, v{vS}, v{vS+2}
    v_add_f32 v{vQ}, v{vQ}, v{vQ+2}
    s_nop 1
    v_add_f32_dpp v{vS+1}, v{vS}, v{vS} quad_perm:[1,0,3,2] row_mask:0xf bank_mask:0xf
    v_add_f32_dpp v{vQ+1}, v{vQ}, v{vQ} quad_perm:[1,0,3,2] row_mask:0xf bank_mask:0xf
    s_nop 1
    v_add_f32_dpp v{vS}, v{vS+1}, v{vS+1} quad_perm:[2,3,0,1] row_mask:0xf bank_mask:0xf
    v_add_f32_dpp v{vQ}, v{vQ+1}, v{vQ+1} quad_perm:[2,3,0,1] row_mask:0xf bank_mask:0xf
    v_mul_f32 v{vS}, {f2u(1.0/512):#x}, v{vS}
    v_mul_f32 v{vQ}, {f2u(1.0/512):#x}, v{vQ}
    v_fma_f32 v{vQ}, -v{vS}, v{vS}, v{vQ}
    v_max_f32 v{vQ}, 0, v{vQ}
    v_cvt_pk_bf16_f32 v{vS+1}, v{vS}, v{vQ}
    v_lshlrev_b32 v{vNM}, 16, v{vS+1}
    v_xor_b32 v{vNM}, 0x80000000, v{vNM}
    v_and_b32 v{vQ}, s{sMask}, v{vS+1}
    v_add_f32 v{vQ}, {f2u(1e-5):#x}, v{vQ}
    v_cvt_pk_bf16_f32 v{vQ}, v{vQ}, v{vQ}
    v_and_b32 v{vQ}, s{sMask}, v{vQ}
    v_sqrt_f32 v{vQ}, v{vQ}
    s_nop 0
    v_cvt_pk_bf16_f32 v{vQ}, v{vQ}, v{vQ}
    v_and_b32 v{vQ}, s{sMask}, v{vQ}
    v_rcp_f32 v{vRI}, v{vQ}
    s_nop 0
    v_fma_f32 v{vS}, -v{vQ}, v{vRI}, 1.0
    v_fma_f32 v{vRI}, v{vS}, v{vRI}, v{vRI}
    """)
    T = vB
    for i in range(16):
        xs = [vAcc + 4 * i + d for d in range(4)]
        tb = T + 8 * (i % 2)
        for d in range(4):
            a(f"v_lshlrev_b32 v{tb+2*d}, 16, v{xs[d]}")
            a(f"v_and_b32 v{tb+2*d+1}, s{sMask}, v{xs[d]}")
        for d in range(4):
            a(f"v_pk_add_f32 v[{tb+2*d}:{tb+2*d+1}], v[{tb+2*d}:{tb+2*d+1}], v[{vNM}:{vNM+1}] op_sel_hi:[1,0]")
        if 'lnr2' not in a.flags:
            for d in range(4):
                a(f"v_cvt_pk_bf16_f32 v{xs[d]}, v{tb+2*d}, v{tb+2*d+1}")
            for d in range(4):
                a(f"v_lshlrev_b32 v{tb+2*d}, 16, v{xs[d]}")
                a(f"v_and_b32 v{tb+2*d+1}, s{sMask}, v{xs[d]}")
        for d in range(4):
            a(f"v_pk_mul_f32 v[{tb+2*d}:{tb+2*d+1}], v[{tb+2*d}:{tb+2*d+1}], v[{vRI}:{vRI+1}] op_sel_hi:[1,0]")
        for d in range(4):
            a(f"v_cvt_pk_bf16_f32 v{xs[d]}, v{tb+2*d}, v{tb+2*d+1}")
            if 'deg1' in a.flags: a(f"v_and_b32 v{xs[d]}, 0xfffefffe, v{xs[d]}")
            if 'deg2' in a.flags: a(f"v_and_b32 v{xs[d]}, 0xfffcfffc, v{xs[d]}")
        a(f"ds_write_b128 v{vLdsWr}, v[{xs[0]}:{xs[3]}] offset:{2048*i}")
    a("s_waitcnt lgkmcnt(0)\ns_barrier")
    stamp(a, 2)
    L_idle = 'L_k1_idle'
    a(f"""
    s_cmp_eq_u32 s{sAct}, 0
    s_cbranch_scc1 {L_idle}
    """)
    for g in range(32):
        a(f"ds_read_b128 v[{vA+4*g}:{vA+4*g+3}], v{vAE if g % 2 == 0 else vAO} offset:{1024*g}")
    a("s_waitcnt vmcnt(0) lgkmcnt(0)\ns_barrier")
    stamp(a, 3)
    for j in range(2, 10):
        dma_chunk(j)

    L_vtype = 'L_k1_vtype'
    L_epiV = 'L_k1_epiV'
    a.c("V type: wq==1 && cb>=8")
    a(f"""
    s_cmp_ge_u32 s{sCb}, 8
    s_cselect_b32 s{sT}, 1, 0
    s_and_b32 s{sT}, s{sT}, s{sWq}
    s_cmp_eq_u32 s{sT}, 1
    s_cbranch_scc1 {L_vtype}
    """)

    def mainloop(normal):
        win = [0]

        def reads(s):
            j, ks = s // 2, s % 2
            base = slot(j) * 16384
            w = base // 49152 * 49152
            if w != win[0]:
                for ct in range(4):
                    a(f"v_add_u32 v{vTr+ct}, {(w - win[0]) & 0xffffffff:#x}, v{vTr+ct}")
                win[0] = w
            bs = vB + 16 * (s % 2)
            for ct in range(4):
                for hr in range(2):
                    off = base - w + (16 * ks + 4 * hr) * 256
                    if 'notr' in a.flags: continue
                    a(f"ds_read_b64_tr_b16 v[{bs+4*ct+2*hr}:{bs+4*ct+2*hr+1}], v{vTr+ct} offset:{off}")

        reads(0)
        for s in range(32):
            if s + 1 < 32:
                m = (s + 1) // 2
                if (s + 1) % 2 == 0 and m >= 2:
                    last = min(15, max(9, m + 7))
                    a(f"s_waitcnt vmcnt({2*(last-m)})\ns_barrier")
                    if m + 8 <= 15:
                        dma_chunk(m + 8)
                reads(s + 1)
                a("s_waitcnt lgkmcnt(8)")
            else:
                a("s_waitcnt lgkmcnt(0)")
            bs = vB + 16 * (s % 2)
            for ct in range(4):
                A = f"v[{vA+4*s}:{vA+4*s+3}]"
                B = f"v[{bs+4*ct}:{bs+4*ct+3}]"
                D = f"v[{vAcc+16*ct}:{vAcc+16*ct+15}]"
                C = D if s > 0 else "0"
                if 'nomfma' in a.flags and s > 0: continue
                if normal:
                    a(f"v_mfma_f32_32x32x16_bf16 {D}, {A}, {B}, {C}")
                else:
                    a(f"v_mfma_f32_32x32x16_bf16 {D}, {B}, {A}, {C}")
        a.nop(20)
        stamp(a, 4)

    def fin():
        if getattr(a, 'instr', False):
            a("s_waitcnt vmcnt(0)")
            stamp(a, 5)
            stamp_flush(a, 0, 6, 10, sWave, 8)
        a("s_endpgm")

    mainloop(False)
    L_epiZ = 'L_k1_epiZ'
    P = vB
    a(f"""
    s_cmp_eq_u32 s{sWq}, 0
    s_cbranch_scc1 {L_epiZ}
    """)
    a.c("Q or K: base = (cb<4 ? QF : KF) + (cb%4)*8*65536 + tt*1024 ; note KF-QF = 4*8*65536")
    L_noscale = 'L_k1_noscale'
    a(f"""
    s_lshl_b32 s{sBase}, s{sCb}, 19
    s_lshl_b32 s{sT}, s{sTT}, 10
    s_add_u32 s{sBase}, s{sBase}, s{sT}
    s_cmp_ge_u32 s{sCb}, 4
    s_cbranch_scc1 {L_noscale}
    s_mov_b32 s{sT2}, {f2u(QSCALE):#x}
    """)
    assert KF - QF == 4 * 8 * 65536 and QF == 0
    for i in range(64):
        a(f"v_mul_f32 v{vAcc+i}, s{sT2}, v{vAcc+i}")
    a.label(L_noscale)
    for g in range(8):
        for d in range(4):
            a(f"v_cvt_pk_bf16_f32 v{P+4*g+d}, v{vAcc+8*g+2*d}, v{vAcc+8*g+2*d+1}")
        a(f"s_add_u32 s{sT}, s{sBase}, {g*65536}")
        a(f"buffer_store_dwordx4 v[{P+4*g}:{P+4*g+3}], v{vL16}, s[{sWS}:{sWS+3}], s{sT} offen")
    fin()

    a.label(L_epiZ)
    a.c("z: gelu, store, stats")
    vC1, vC2, vOne = 16, 18, 20
    vSs, vSq = 22, 24
    a(f"""
    v_mov_b32 v{vC1}, {f2u(GC1):#x}
    v_mov_b32 v{vC2}, {f2u(GC2):#x}
    v_mov_b32 v{vOne}, 1.0
    v_mov_b32 v{vSs}, 0
    v_mov_b32 v{vSs+1}, 0
    v_mov_b32 v{vSq}, 0
    v_mov_b32 v{vSq+1}, 0
    s_cmp_ge_u32 s{sCb}, 7
    s_mov_b32 s{sBase}, {Z1F}
    s_cmov_b32 s{sBase}, {Z2F - 7*8192}
    s_lshl_b32 s{sT}, s{sCb}, 13
    s_add_u32 s{sBase}, s{sBase}, s{sT}
    s_mul_i32 s{sT}, s{sTT}, 57344
    s_add_u32 s{sBase}, s{sBase}, s{sT}
    """)
    G = vA
    for g in range(8):
        t = G + 8 * (g % 2)
        h = vAcc + 8 * g
        for d in range(4):
            a(f"v_pk_mul_f32 v[{t+2*d}:{t+2*d+1}], v[{h+2*d}:{h+2*d+1}], v[{h+2*d}:{h+2*d+1}]")
        for d in range(4):
            a(f"v_pk_fma_f32 v[{t+2*d}:{t+2*d+1}], v[{t+2*d}:{t+2*d+1}], v[{vC2}:{vC2+1}], v[{vC1}:{vC1+1}] op_sel_hi:[1,0,0]")
        for d in range(4):
            a(f"v_pk_mul_f32 v[{t+2*d}:{t+2*d+1}], v[{t+2*d}:{t+2*d+1}], v[{h+2*d}:{h+2*d+1}]")
        for d in range(8):
            a(f"v_exp_f32 v{t+d}, v{t+d}")
        for d in range(4):
            a(f"v_pk_add_f32 v[{t+2*d}:{t+2*d+1}], v[{t+2*d}:{t+2*d+1}], v[{vOne}:{vOne+1}] op_sel_hi:[1,0]")
        for d in range(8):
            a(f"v_rcp_f32 v{t+d}, v{t+d}")
        for d in range(4):
            a(f"v_pk_mul_f32 v[{t+2*d}:{t+2*d+1}], v[{t+2*d}:{t+2*d+1}], v[{h+2*d}:{h+2*d+1}]")
        for d in range(4):
            a(f"v_cvt_pk_bf16_f32 v{P+4*g+d}, v{t+2*d}, v{t+2*d+1}")
        a(f"s_add_u32 s{sT}, s{sBase}, {g*1024}")
        a(f"buffer_store_dwordx4 v[{P+4*g}:{P+4*g+3}], v{vL16}, s[{sWS}:{sWS+3}], s{sT} offen")
        for d in range(4):
            a(f"v_dot2c_f32_bf16 v{vSs+d%2}, s{sOnes}, v{P+4*g+d}")
            a(f"v_dot2c_f32_bf16 v{vSq+d%2}, v{P+4*g+d}, v{P+4*g+d}")
    a(f"""
    s_cmp_lt_u32 s{sCb}, 7
    s_cbranch_scc1 L_k1_zfin
    s_nop 2
    v_add_f32 v{vSs}, v{vSs}, v{vSs+1}
    v_add_f32 v{vSq}, v{vSq}, v{vSq+1}
    v_mov_b32 v{vSs+1}, v{vSs}
    v_mov_b32 v{vSq+1}, v{vSq}
    s_nop 1
    v_permlane32_swap_b32 v{vSs}, v{vSs+1}
    v_permlane32_swap_b32 v{vSq}, v{vSq+1}
    s_nop 1
    v_add_f32 v{vSs}, v{vSs}, v{vSs+1}
    v_add_f32 v{vSs+1}, v{vSq}, v{vSq+1}
    v_and_b32 v{vT1}, 31, v{vLane}
    v_lshlrev_b32 v{vT1}, 3, v{vT1}
    s_sub_u32 s{sT}, s{sCb}, 7
    s_lshl_b32 s{sT}, s{sT}, 14
    s_lshl_b32 s{sT2}, s{sTT}, 8
    s_add_u32 s{sT}, s{sT}, s{sT2}
    s_add_u32 s{sT}, s{sT}, {ST}
    buffer_store_dwordx2 v[{vSs}:{vSs+1}], v{vT1}, s[{sWS}:{sWS+3}], s{sT} offen
    """)
    a.label('L_k1_zfin')
    fin()

    a.label(L_vtype)
    mainloop(True)
    a(f"""
    s_sub_u32 s{sT}, s{sCb}, 8
    s_lshl_b32 s{sBase}, s{sT}, 19
    s_lshl_b32 s{sT}, s{sTT}, 10
    s_add_u32 s{sBase}, s{sBase}, s{sT}
    s_add_u32 s{sBase}, s{sBase}, {VF}
    """)
    for g in range(8):
        ct, j = g // 2, g % 2
        for d in range(4):
            a(f"v_cvt_pk_bf16_f32 v{P+4*g+d}, v{vAcc+8*g+2*d}, v{vAcc+8*g+2*d+1}")
        a(f"s_add_u32 s{sT}, s{sBase}, {ct*2*65536}")
        a(f"buffer_store_dwordx4 v[{P+4*g}:{P+4*g+3}], v{vVoff}, s[{sWS}:{sWS+3}], s{sT} offen offset:{j*512}")
    fin()

    a.label(L_idle)
    for i in range(15):
        a("s_barrier")
    a.label(L_end)
    a("s_endpgm")
    a.kernel_end(name, 256, 102)
```

```python
from asmlib import *
from gen_k1 import *

MSHIFT = 80.0


def k2fin(a, k):
    if getattr(a, 'instr', False):
        a("s_waitcnt vmcnt(0)")
        stamp(a, k)
        stamp_flush(a, 1, k + 1, 4, 24, 4)
    a("s_endpgm")


def mfma(a, D, A, B, C):
    Cs = "0" if C is None else f"v[{C}:{C+15}]"
    a(f"v_mfma_f32_32x32x16_bf16 v[{D}:{D+15}], v[{A}:{A+3}], v[{B}:{B+3}], {Cs}")


def ln_scalars(a, vS, vQ, vNM, vRI, vT, sMask, n):
    a(f"""
    v_mul_f32 v{vS}, {f2u(1.0/n):#x}, v{vS}
    v_mul_f32 v{vQ}, {f2u(1.0/n):#x}, v{vQ}
    v_fma_f32 v{vQ}, -v{vS}, v{vS}, v{vQ}
    v_max_f32 v{vQ}, 0, v{vQ}
    v_cvt_pk_bf16_f32 v{vT}, v{vS}, v{vQ}
    v_lshlrev_b32 v{vNM}, 16, v{vT}
    v_xor_b32 v{vNM}, 0x80000000, v{vNM}
    v_and_b32 v{vQ}, s{sMask}, v{vT}
    v_add_f32 v{vQ}, {f2u(1e-5):#x}, v{vQ}
    v_cvt_pk_bf16_f32 v{vQ}, v{vQ}, v{vQ}
    v_and_b32 v{vQ}, s{sMask}, v{vQ}
    v_sqrt_f32 v{vQ}, v{vQ}
    s_nop 0
    v_cvt_pk_bf16_f32 v{vQ}, v{vQ}, v{vQ}
    v_and_b32 v{vQ}, s{sMask}, v{vQ}
    v_rcp_f32 v{vRI}, v{vQ}
    s_nop 0
    v_fma_f32 v{vS}, -v{vQ}, v{vRI}, 1.0
    v_fma_f32 v{vRI}, v{vS}, v{vRI}, v{vRI}
    """)


def ln_apply4(a, x0, tb, vNM, vRI, sMask):
    xs = [x0 + d for d in range(4)]
    for d in range(4):
        a(f"v_lshlrev_b32 v{tb+2*d}, 16, v{xs[d]}")
        a(f"v_and_b32 v{tb+2*d+1}, s{sMask}, v{xs[d]}")
    for d in range(4):
        a(f"v_pk_add_f32 v[{tb+2*d}:{tb+2*d+1}], v[{tb+2*d}:{tb+2*d+1}], v[{vNM}:{vNM+1}] op_sel_hi:[1,0]")
    for d in range(4):
        a(f"v_cvt_pk_bf16_f32 v{xs[d]}, v{tb+2*d}, v{tb+2*d+1}")
    for d in range(4):
        a(f"v_lshlrev_b32 v{tb+2*d}, 16, v{xs[d]}")
        a(f"v_and_b32 v{tb+2*d+1}, s{sMask}, v{xs[d]}")
    for d in range(4):
        a(f"v_pk_mul_f32 v[{tb+2*d}:{tb+2*d+1}], v[{tb+2*d}:{tb+2*d+1}], v[{vRI}:{vRI+1}] op_sel_hi:[1,0]")
    for d in range(4):
        a(f"v_cvt_pk_bf16_f32 v{xs[d]}, v{tb+2*d}, v{tb+2*d+1}")


def role_attn(a, opts):
    sWS = 8
    sWave, sHead, sQb, sT, sT2, sKoff, sLds, sC, sSlot, sSlotN, sOut = 24, 25, 26, 27, 28, 29, 30, 31, 32, 33, 34
    sVm = 36
    sCls = 38
    sBad = 40
    vLane, vT1, vT2, vL16, vVl = 1, 2, 3, 4, 5
    vKa, vVa, vKn = 6, 7, 8
    vVn = 9
    vQ = 12
    vK = 20
    vV = 28
    vP = 44
    vS = 64
    vNC = 96
    vO = 128
    vTmp = 160

    a.c("==== attention role")
    a(f"""
    s_and_b32 s{sT}, s2, 7
    s_lshr_b32 s{sT2}, s2, 3
    s_lshl_b32 s{sHead}, s{sT}, 2
    s_lshr_b32 s{sT}, s{sT2}, 3
    s_add_u32 s{sHead}, s{sHead}, s{sT}
    s_and_b32 s{sQb}, s{sT2}, 7
    v_lshlrev_b32 v{vL16}, 4, v{vLane}
    s_lshl_b32 s{sKoff}, s{sHead}, 16
    s_lshl_b32 s{sLds}, s{sWave}, 11
    s_add_u32 s{sKoff}, s{sKoff}, s{sLds}
    s_add_u32 s{sKoff}, s{sKoff}, {KF}
    """)

    def dma_chunk(slot_expr_imm=None, sslot=None):
        if sslot is None:
            a(f"s_add_u32 m0, s{sLds}, {slot_expr_imm}")
        else:
            a(f"s_add_u32 m0, s{sLds}, s{sslot}")
        a(f"""
        s_add_u32 s{sT}, s{sKoff}, {VF-KF}
        buffer_load_dwordx4 v{vL16}, s[{sWS}:{sWS+3}], s{sKoff} offen lds
        buffer_load_dwordx4 v{vL16}, s[{sWS}:{sWS+3}], s{sKoff} offen offset:1024 lds
        s_add_u32 m0, m0, 8192
        s_add_u32 s{sKoff}, s{sKoff}, 8192
        buffer_load_dwordx4 v{vL16}, s[{sWS}:{sWS+3}], s{sT} offen lds
        buffer_load_dwordx4 v{vL16}, s[{sWS}:{sWS+3}], s{sT} offen offset:1024 lds
        """)

    a.c("Q loads: QF + head*65536 + (8*qb + 2*w)*1024")
    a(f"""
    s_lshl_b32 s{sT}, s{sQb}, 3
    s_lshl_b32 s{sT2}, s{sWave}, 1
    s_add_u32 s{sT}, s{sT}, s{sT2}
    s_mul_i32 s{sOut}, s{sT}, 90112
    s_lshl_b32 s{sT}, s{sT}, 10
    s_lshl_b32 s{sT2}, s{sHead}, 16
    s_add_u32 s{sT}, s{sT}, s{sT2}
    buffer_load_dwordx4 v[{vQ}:{vQ+3}], v{vL16}, s[{sWS}:{sWS+3}], s{sT} offen
    buffer_load_dwordx4 v[{vQ+4}:{vQ+7}], v{vL16}, s[{sWS}:{sWS+3}], s{sT} offen offset:1024
    s_lshl_b32 s{sT2}, s{sHead}, 10
    s_add_u32 s{sOut}, s{sOut}, s{sT2}
    s_add_u32 s{sOut}, s{sOut}, {AF}
    """)
    for c in range(3):
        dma_chunk(c * 16384)
    a.c("V lane offset: hf*256 + (l%16)*16 ; mask lanes (l%32)<16")
    a(f"""
    v_lshrrev_b32 v{vT1}, 5, v{vLane}
    v_and_b32 v{vT2}, 15, v{vLane}
    v_lshlrev_b32 v{vT2}, 4, v{vT2}
    v_lshl_add_u32 v{vVl}, v{vT1}, 8, v{vT2}
    s_mov_b32 s{sVm}, 0x0000ffff
    s_mov_b32 s{sVm+1}, 0x0000ffff
    v_mov_b32 v{vKa}, v{vL16}
    v_add_u32 v{vVa}, 8192, v{vVl}
    s_mov_b32 s{sT}, 0x3f803f80
    """)
    for i in range(16):
        a(f"v_mov_b32 v{vV+i}, s{sT}")
    for i in range(16):
        a(f"v_mov_b32 v{vP+i}, 0")
    for i in range(32):
        a(f"v_mov_b32 v{vO+i}, 0")
    a("s_waitcnt vmcnt(8)\ns_barrier")
    stamp(a, 1)
    a.c("sample max over first 64 keys")
    a(f"""
    ds_read_b128 v[{vK}:{vK+3}], v{vKa}
    ds_read_b128 v[{vK+4}:{vK+7}], v{vKa} offset:1024
    s_mov_b64 exec, s[{sVm}:{sVm+1}]
    ds_read_b128 v[{vV}:{vV+3}], v{vVa}
    ds_read_b128 v[{vV+4}:{vV+7}], v{vVa} offset:512
    s_mov_b64 exec, -1
    s_waitcnt lgkmcnt(2)
    """)
    for qa in range(2):
        for t in range(2):
            mfma(a, vTmp + 32 * qa + 16 * t, vK + 4 * t, vQ + 4 * qa, None)
    a.nop(16)
    for qa in range(2):
        b = vTmp + 32 * qa
        n = 32
        cur = list(range(b, b + 32))
        while len(cur) > 1:
            nxt = []
            i = 0
            while i < len(cur):
                if i + 2 < len(cur):
                    a(f"v_max3_f32 v{cur[i]}, v{cur[i]}, v{cur[i+1]}, v{cur[i+2]}")
                    nxt.append(cur[i]); i += 3
                elif i + 1 < len(cur):
                    a(f"v_max_f32 v{cur[i]}, v{cur[i]}, v{cur[i+1]}")
                    nxt.append(cur[i]); i += 2
                else:
                    nxt.append(cur[i]); i += 1
            cur = nxt
        a(f"""
        v_mov_b32 v{b+1}, v{b}
        s_nop 1
        v_permlane32_swap_b32 v{b}, v{b+1}
        s_nop 1
        v_max_f32 v{b}, v{b}, v{b+1}
        v_sub_f32 v{b}, {f2u(-MSHIFT):#x}, v{b}
        """)
        for i in range(16):
            a(f"v_mov_b32 v{vNC+16*qa+i}, v{b}")
    a(f"""
    s_mov_b32 s{sC}, 0
    s_mov_b32 s{sSlot}, 0
    s_nop 1
    """)
    mfma(a, vS, vK, vQ, vNC)
    a.nop(12)
    if opts.get('prio_attn'):
        a(f"s_setprio {opts['prio_attn']}")
    L_loop = 'L_att_loop'
    stamp(a, 2)
    a(".p2align 6")
    a.label(L_loop)
    a.c("next chunk addresses")
    a(f"""
    s_add_u32 s{sSlotN}, s{sSlot}, 16384
    s_and_b32 s{sSlotN}, s{sSlotN}, 0xffff
    v_add_u32 v{vKn}, s{sSlotN}, v{vL16}
    s_add_u32 s{sT}, s{sSlotN}, 8192
    v_add_u32 v{vVn}, s{sT}, v{vVl}
    """)
    for t in range(8):
        for qa in range(2):
            u = 2 * t + qa
            S = vS + 16 * (u % 2)
            Sn = vS + 16 * ((u + 1) % 2)
            P = vP + 8 * (u % 2)
            Pp = vP + 8 * ((u + 1) % 2)
            Kc = vK + 4 * (t % 2)
            Kn = vK + 4 * ((t + 1) % 2)
            Vc = vV + 8 * (t % 2)
            Vn = vV + 8 * ((t + 1) % 2)
            if qa == 0:
                if t == 6:
                    L1 = a.newlabel('att_w')
                    L2 = a.newlabel('att_d')
                    a(f"""
                    s_waitcnt vmcnt(4)
                    s_cmp_lt_u32 s{sC}, 6
                    s_cbranch_scc1 {L1}
                    s_waitcnt vmcnt(0)
                    """)
                    a.label(L1)
                    a(f"""
                    s_barrier
                    s_cmp_ge_u32 s{sC}, 5
                    s_cbranch_scc1 {L2}
                    s_add_u32 s{sT2}, s{sSlot}, 49152
                    s_and_b32 s{sT2}, s{sT2}, 0xffff
                    """)
                    dma_chunk(sslot=sT2)
                    a.label(L2)
                if t < 7:
                    a(f"ds_read_b128 v[{Kn}:{Kn+3}], v{vKa} offset:{1024*(t+1)}")
                else:
                    a(f"ds_read_b128 v[{Kn}:{Kn+3}], v{vKn}")
                mfma(a, Sn, Kc, vQ + 4, vNC + 16)
            else:
                a("s_waitcnt lgkmcnt(0)")
                mfma(a, Sn, Kn, vQ, vNC)
            for i in range(4):
                a(f"v_exp_f32 v{S+i}, v{S+i}")
            if qa == 0:
                mfma(a, vO + 16, Vn + 4, Pp + 4, vO + 16)
            else:
                mfma(a, vO, Vc + 4, Pp + 4, vO)
                a(f"s_mov_b64 exec, s[{sVm}:{sVm+1}]")
                if t < 7:
                    a(f"ds_read_b128 v[{Vn}:{Vn+3}], v{vVa} offset:{1024*(t+1)}")
                    a(f"ds_read_b128 v[{Vn+4}:{Vn+7}], v{vVa} offset:{1024*(t+1)+512}")
                else:
                    a(f"ds_read_b128 v[{Vn}:{Vn+3}], v{vVn}")
                    a(f"ds_read_b128 v[{Vn+4}:{Vn+7}], v{vVn} offset:512")
                a("s_mov_b64 exec, -1")
            for i in range(4, 8):
                a(f"v_exp_f32 v{S+i}, v{S+i}")
            for d in range(4):
                a(f"v_cvt_pk_bf16_f32 v{P+d}, v{S+2*d}, v{S+2*d+1}")
            for i in range(8, 10):
                a(f"v_exp_f32 v{S+i}, v{S+i}")
            if qa == 0:
                a("s_waitcnt lgkmcnt(1)")
            mfma(a, vO + 16 * qa, Vc, P, vO + 16 * qa)
            for i in range(10, 16):
                a(f"v_exp_f32 v{S+i}, v{S+i}")
            for d in range(4, 8):
                a(f"v_cvt_pk_bf16_f32 v{P+d}, v{S+2*d}, v{S+2*d+1}")
    a(f"""
    v_mov_b32 v{vKa}, v{vKn}
    v_mov_b32 v{vVa}, v{vVn}
    s_mov_b32 s{sSlot}, s{sSlotN}
    s_add_u32 s{sC}, s{sC}, 1
    s_cmp_lt_u32 s{sC}, 8
    s_cbranch_scc1 {L_loop}
    """)
    mfma(a, vO + 16, vV + 8 + 4, vP + 8 + 4, vO + 16)
    a("s_setprio 0")
    a("s_waitcnt lgkmcnt(0)")
    a.nop(20)
    stamp(a, 3)
    a.c("validity check")
    L_fb = 'L_att_fallback'
    L_fin = 'L_att_fin'
    a(f"""
    s_mov_b32 s{sCls}, 0x2ff
    s_mov_b64 s[{sBad}:{sBad+1}], 0
    """)
    for qa in range(2):
        a(f"v_cmp_class_f32 vcc, v{vO+16*qa+8}, s{sCls}".replace("vcc, v", "s[42:43], v"))
        a(f"s_or_b64 s[{sBad}:{sBad+1}], s[{sBad}:{sBad+1}], s[42:43]")
    a(f"s_mov_b32 s{sCls}, 0x207")
    for qa in range(2):
        for i in range(8):
            a(f"v_cmp_class_f32 s[42:43], v{vO+16*qa+i}, s{sCls}")
            a(f"s_or_b64 s[{sBad}:{sBad+1}], s[{sBad}:{sBad+1}], s[42:43]")
    if opts.get('force_fallback'):
        a(f"s_branch {L_fb}")
    a(f"""
    s_cmp_lg_u64 s[{sBad}:{sBad+1}], 0
    s_cbranch_scc1 {L_fb}
    """)
    a.label(L_fin)
    for qa in range(2):
        o = vO + 16 * qa
        a(f"v_rcp_f32 v{o+9}, v{o+8}")
        a("s_nop 0")
        a(f"v_fma_f32 v{o+10}, -v{o+8}, v{o+9}, 1.0")
        a(f"v_fma_f32 v{o+9}, v{o+10}, v{o+9}, v{o+9}")
        for i in range(8):
            a(f"v_mul_f32 v{o+i}, v{o+i}, v{o+9}")
        for d in range(4):
            a(f"v_cvt_pk_bf16_f32 v{vP+4*qa+d}, v{o+2*d}, v{o+2*d+1}")
        a(f"s_add_u32 s{sT}, s{sOut}, {90112*qa}")
        a(f"buffer_store_dwordx4 v[{vP+4*qa}:{vP+4*qa+3}], v{vL16}, s[{sWS}:{sWS+3}], s{sT} offen")
    k2fin(a, 4)

    a.label(L_fb)
    vM = vTmp
    vAl = vTmp + 2
    vMx = vTmp + 4
    a(f"""
    s_lshl_b32 s{sKoff}, s{sHead}, 16
    s_add_u32 s{sKoff}, s{sKoff}, {KF}
    s_mov_b32 s{sC}, 0
    v_mov_b32 v{vM}, {f2u(-3.0e38):#x}
    v_mov_b32 v{vM+1}, {f2u(-3.0e38):#x}
    """)
    for i in range(32):
        a(f"v_mov_b32 v{vO+i}, 0")
    L_fl = 'L_att_fbloop'
    a.label(L_fl)
    a(f"""
    s_add_u32 s{sT}, s{sKoff}, {VF-KF}
    buffer_load_dwordx4 v[{vK}:{vK+3}], v{vL16}, s[{sWS}:{sWS+3}], s{sKoff} offen
    s_mov_b64 exec, s[{sVm}:{sVm+1}]
    buffer_load_dwordx4 v[{vV}:{vV+3}], v{vVl}, s[{sWS}:{sWS+3}], s{sT} offen
    buffer_load_dwordx4 v[{vV+4}:{vV+7}], v{vVl}, s[{sWS}:{sWS+3}], s{sT} offen offset:512
    s_mov_b64 exec, -1
    s_waitcnt vmcnt(0)
    """)
    for qa in range(2):
        S = vS + 16 * qa
        o = vO + 16 * qa
        mfma(a, S, vK, vQ + 4 * qa, None)
        a.nop(20)
        a(f"v_max3_f32 v{vMx}, v{S}, v{S+1}, v{S+2}")
        for i in range(3, 15, 2):
            a(f"v_max3_f32 v{vMx}, v{vMx}, v{S+i}, v{S+i+1}")
        a(f"""
        v_max3_f32 v{vMx}, v{vMx}, v{S+15}, v{vM+qa}
        v_mov_b32 v{vMx+1}, v{vMx}
        s_nop 1
        v_permlane32_swap_b32 v{vMx}, v{vMx+1}
        s_nop 1
        v_max_f32 v{vMx}, v{vMx}, v{vMx+1}
        v_sub_f32 v{vAl}, v{vM+qa}, v{vMx}
        v_exp_f32 v{vAl}, v{vAl}
        v_mov_b32 v{vM+qa}, v{vMx}
        """)
        for i in range(16):
            a(f"v_mul_f32 v{o+i}, v{o+i}, v{vAl}")
        for i in range(16):
            a(f"v_sub_f32 v{S+i}, v{S+i}, v{vMx}")
        for i in range(16):
            a(f"v_exp_f32 v{S+i}, v{S+i}")
        a("s_nop 0")
        for d in range(8):
            a(f"v_cvt_pk_bf16_f32 v{vP+d}, v{S+2*d}, v{S+2*d+1}")
        a("s_nop 1")
        mfma(a, o, vV, vP, o)
        mfma(a, o, vV + 4, vP + 4, o)
        a.nop(20)
    a(f"""
    s_add_u32 s{sKoff}, s{sKoff}, 1024
    s_add_u32 s{sC}, s{sC}, 1
    s_cmp_lt_u32 s{sC}, 64
    s_cbranch_scc1 {L_fl}
    s_branch {L_fin}
    """)


def role_spatial(a, opts):
    sWS, sWsp, sBsp, sDbg = 8, 12, 16, 20
    sWave, sTb, sFb, sT, sT2, sWt, sWf, sMask = 24, 25, 26, 27, 28, 29, 30, 31
    sWoff, sZoff, sLW, sLZ, sIt, sTT = 32, 33, 34, 35, 36, 37
    vLane, vT1, vT2, vT3, vL16 = 1, 2, 3, 4, 5
    vWo = 6
    vZo = 8
    vWa = 10
    vZa = 14
    vNM, vRI = 16, 18
    vSt = 20
    vX = 36
    vTt = 52
    vF = 64
    vAcc = 96
    vZ1 = 128
    vBs = 144
    vPk = 148

    a.c("==== spatial role")
    a(f"""
    s_and_b32 s{sT}, s3, 7
    s_lshr_b32 s{sT2}, s3, 3
    s_lshr_b32 s{sTb}, s{sT}, 1
    s_lshl_b32 s{sTb}, s{sTb}, 2
    s_and_b32 s{sFb}, s{sT2}, 3
    s_add_u32 s{sTb}, s{sTb}, s{sFb}
    s_and_b32 s{sFb}, s{sT}, 1
    s_mul_i32 s{sFb}, s{sFb}, 7
    s_lshr_b32 s{sT2}, s{sT2}, 2
    s_add_u32 s{sFb}, s{sFb}, s{sT2}
    s_and_b32 s{sWt}, s{sWave}, 1
    s_lshr_b32 s{sWf}, s{sWave}, 1
    s_mov_b32 s{sMask}, 0xffff0000
    v_lshlrev_b32 v{vL16}, 4, v{vLane}
    """)
    a.c("normalise: tile tt = 4*tb + w")
    a(f"""
    s_lshl_b32 s{sTT}, s{sTb}, 2
    s_add_u32 s{sTT}, s{sTT}, s{sWave}
    v_and_b32 v{vT1}, 31, v{vLane}
    v_lshlrev_b32 v{vT1}, 3, v{vT1}
    s_lshl_b32 s{sT}, s{sTT}, 8
    s_add_u32 s{sT}, s{sT}, {ST}
    """)
    for u in range(7):
        a(f"buffer_load_dwordx2 v[{vSt+2*u}:{vSt+2*u+1}], v{vT1}, s[{sWS}:{sWS+3}], s{sT} offen")
        if u < 6:
            a(f"s_add_u32 s{sT}, s{sT}, 16384")
    a(f"""
    s_mul_i32 s{sT2}, s{sTT}, 57344
    s_lshl_b32 s{sT}, s{sFb}, 12
    s_add_u32 s{sT2}, s{sT2}, s{sT}
    s_add_u32 s{sT}, s{sT2}, {Z2F}
    """)
    for g in range(4):
        a(f"buffer_load_dwordx4 v[{vX+4*g}:{vX+4*g+3}], v{vL16}, s[{sWS}:{sWS+3}], s{sT} offen offset:{1024*g}")
    a.c("DMA lane offsets")
    a(f"""
    v_lshrrev_b32 v{vT1}, 3, v{vLane}
    v_and_b32 v{vT2}, 7, v{vLane}
    v_lshrrev_b32 v{vT3}, 4, v{vLane}
    v_xor_b32 v{vT3}, v{vT2}, v{vT3}
    v_lshlrev_b32 v{vWo}, 4, v{vT3}
    v_lshl_add_u32 v{vWo}, v{vT1}, 12, v{vWo}
    v_xor_b32 v{vWo+1}, 64, v{vWo}
    v_bfe_u32 v{vT3}, v{vLane}, 4, 1
    v_lshlrev_b32 v{vT3}, 2, v{vT3}
    v_xor_b32 v{vT3}, v{vT2}, v{vT3}
    v_lshlrev_b32 v{vT3}, 9, v{vT3}
    v_lshl_add_u32 v{vZo}, v{vT1}, 4, v{vT3}
    """)
    a(f"""
    s_lshl_b32 s{sWoff}, s{sTb}, 7
    s_lshl_b32 s{sT}, s{sWave}, 5
    s_add_u32 s{sWoff}, s{sWoff}, s{sT}
    s_lshl_b32 s{sWoff}, s{sWoff}, 12
    s_mul_i32 s{sZoff}, s{sWf}, 57344
    s_lshl_b32 s{sT}, s{sFb}, 12
    s_add_u32 s{sZoff}, s{sZoff}, s{sT}
    s_lshl_b32 s{sT}, s{sWt}, 8
    s_add_u32 s{sZoff}, s{sZoff}, s{sT}
    s_add_u32 s{sZoff}, s{sZoff}, {Z2N}
    s_lshl_b32 s{sLW}, s{sWave}, 12
    s_lshl_b32 s{sLZ}, s{sWave}, 11
    s_add_u32 s{sLZ}, s{sLZ}, 16384
    """)

    def dma_w(st):
        for q in range(4):
            a(f"s_add_u32 m0, s{sLW}, {st*24576 + q*1024}")
            if q == 0:
                a("s_nop 0")
                a(f"buffer_load_dwordx4 v{vWo}, s[{sWsp}:{sWsp+3}], s{sWoff} offen lds")
            else:
                a(f"s_add_u32 s{sT}, s{sWoff}, {q*8*4096}")
                a(f"buffer_load_dwordx4 v{vWo+q%2}, s[{sWsp}:{sWsp+3}], s{sT} offen lds")
        a(f"s_add_u32 s{sWoff}, s{sWoff}, 128")

    def dma_z(st):
        a(f"""
        s_add_u32 m0, s{sLZ}, {st*24576}
        s_add_u32 s{sT}, s{sZoff}, 128
        buffer_load_dwordx4 v{vZo}, s[{sWS}:{sWS+3}], s{sZoff} offen sc1 lds
        s_add_u32 m0, s{sLZ}, {st*24576+1024}
        s_add_u32 s{sZoff}, s{sZoff}, {2*57344}
        buffer_load_dwordx4 v{vZo}, s[{sWS}:{sWS+3}], s{sT} offen sc1 lds
        """)

    dma_w(0)
    dma_w(1)
    a.c("frag read addresses")
    a(f"""
    v_and_b32 v{vT1}, 31, v{vLane}
    v_lshrrev_b32 v{vT2}, 5, v{vLane}
    v_bfe_u32 v{vT3}, v{vLane}, 1, 3
    v_xor_b32 v{vT3}, v{vT3}, v{vT2}
    s_lshl_b32 s{sT}, s{sWt}, 13
    v_lshl_add_u32 v{vT1}, v{vT1}, 7, s{sT}
    """)
    for ks in range(4):
        a(f"v_xor_b32 v{vWa+ks}, {2*ks}, v{vT3}")
        a(f"v_lshl_add_u32 v{vWa+ks}, v{vWa+ks}, 4, v{vT1}")
    a(f"""
    v_bfe_u32 v{vT1}, v{vLane}, 2, 2
    v_lshl_add_u32 v{vT2}, v{vT2}, 3, v{vT1}
    v_lshlrev_b32 v{vT2}, 7, v{vT2}
    v_bfe_u32 v{vT3}, v{vLane}, 4, 1
    v_lshlrev_b32 v{vT3}, 1, v{vT3}
    v_and_b32 v{vZa}, 1, v{vLane}
    v_add_u32 v{vT3}, v{vT3}, v{vZa}
    s_lshl_b32 s{sT}, s{sWf}, 2
    v_add_u32 v{vT3}, s{sT}, v{vT3}
    v_bfe_u32 v{vZa}, v{vLane}, 3, 1
    v_lshlrev_b32 v{vZa}, 2, v{vZa}
    v_xor_b32 v{vT3}, v{vT3}, v{vZa}
    v_lshl_add_u32 v{vT2}, v{vT3}, 4, v{vT2}
    v_bfe_u32 v{vT3}, v{vLane}, 1, 1
    v_lshl_add_u32 v{vT2}, v{vT3}, 3, v{vT2}
    v_add_u32 v{vZa}, 16384, v{vT2}
    """)
    a("s_waitcnt vmcnt(12)")
    stamp(a, 1)
    for u in range(1, 7):
        a(f"v_add_f32 v{vSt}, v{vSt}, v{vSt+2*u}")
        a(f"v_add_f32 v{vSt+1}, v{vSt+1}, v{vSt+2*u+1}")
    ln_scalars(a, vSt, vSt + 1, vNM, vRI, vSt + 2, sMask, 896)
    a("s_waitcnt vmcnt(8)")
    a(f"s_add_u32 s{sT2}, s{sT2}, {Z2N}")
    for g in range(4):
        ln_apply4(a, vX + 4 * g, vTt, vNM, vRI, sMask)
        a(f"buffer_store_dwordx4 v[{vX+4*g}:{vX+4*g+3}], v{vL16}, s[{sWS}:{sWS+3}], s{sT2} offen offset:{1024*g} sc0 sc1")
    L_np = 'L_sp_nopoll'
    L_poll = 'L_sp_poll'
    a("s_waitcnt vmcnt(0)")
    stamp(a, 2)
    a(f"""
    s_barrier
    s_cmp_lg_u32 s{sWave}, 0
    s_cbranch_scc1 {L_np}
    s_lshl_b32 s{sT}, s{sFb}, 2
    v_mov_b32 v{vT1}, 1
    s_mov_b64 exec, 1
    buffer_atomic_add v{vT1}, off, s[{sDbg}:{sDbg+3}], s{sT} sc1
    """)
    a.label(L_poll)
    a(f"""
    buffer_load_dword v{vT2}, off, s[{sDbg}:{sDbg+3}], s{sT} sc1
    s_waitcnt vmcnt(0)
    v_readfirstlane_b32 s{sT2}, v{vT2}
    s_nop 3
    s_cmp_ge_u32 s{sT2}, 16
    s_cbranch_scc1 {L_np}_x
    s_sleep 2
    s_branch {L_poll}
    """)
    a.label(L_np + '_x')
    a("s_mov_b64 exec, -1")
    a.label(L_np)
    a("s_barrier")
    stamp(a, 3)
    dma_z(0)
    dma_z(1)
    for i in range(32):
        a(f"v_mov_b32 v{vAcc+i}, 0")

    def reads(st, ks):
        f = vF + 12 * (ks % 2)
        base = st * 24576
        a(f"ds_read_b128 v[{f}:{f+3}], v{vWa+ks} offset:{base}")
        a(f"ds_read_b128 v[{f+4}:{f+7}], v{vWa+ks} offset:{base+4096}")
        a(f"ds_read_b64_tr_b16 v[{f+8}:{f+9}], v{vZa} offset:{base + (16*ks)*128}")
        a(f"ds_read_b64_tr_b16 v[{f+10}:{f+11}], v{vZa} offset:{base + (16*ks+4)*128}")

    def body(st, wait, dma):
        a(f"s_waitcnt vmcnt({wait})\ns_barrier")
        reads(st, 0)
        if dma:
            dma_w((st + 2) % 3)
            dma_z((st + 2) % 3)
        for ks in range(4):
            if ks < 3:
                reads(st, ks + 1)
                a("s_waitcnt lgkmcnt(4)")
            else:
                a("s_waitcnt lgkmcnt(0)")
            f = vF + 12 * (ks % 2)
            mfma(a, vAcc, f + 8, f, vAcc)
            mfma(a, vAcc + 16, f + 8, f + 4, vAcc + 16)

    body(0, 2, True)
    body(1, 6, True)
    stamp(a, 4)
    a(f"s_mov_b32 s{sIt}, 9")
    L_l = 'L_sp_loop'
    a.label(L_l)
    body(2, 6, True)
    body(0, 6, True)
    body(1, 6, True)
    a(f"""
    s_sub_u32 s{sIt}, s{sIt}, 1
    s_cmp_lg_u32 s{sIt}, 0
    s_cbranch_scc1 {L_l}
    """)
    body(2, 6, True)
    body(0, 6, False)
    a.c("epilogue loads: z1, b")
    a(f"""
    s_lshl_b32 s{sTT}, s{sTb}, 2
    s_lshl_b32 s{sT}, s{sWt}, 1
    s_add_u32 s{sTT}, s{sTT}, s{sT}
    s_lshl_b32 s{sT2}, s{sFb}, 2
    s_lshl_b32 s{sT}, s{sWf}, 1
    s_add_u32 s{sT2}, s{sT2}, s{sT}
    s_lshl_b32 s{sT2}, s{sT2}, 10
    s_mul_i32 s{sWoff}, s{sTT}, 57344
    s_add_u32 s{sWoff}, s{sWoff}, s{sT2}
    s_add_u32 s{sWoff}, s{sWoff}, {Z1F}
    s_mul_i32 s{sZoff}, s{sTT}, 90112
    s_add_u32 s{sZoff}, s{sZoff}, s{sT2}
    s_add_u32 s{sZoff}, s{sZoff}, {AF + 32*1024}
    v_and_b32 v{vT1}, 31, v{vLane}
    v_lshlrev_b32 v{vT1}, 1, v{vT1}
    s_lshl_b32 s{sT}, s{sTT}, 6
    """)
    body(1, 0, False)
    stamp(a, 5)
    a(f"""
    buffer_load_ushort v{vBs}, v{vT1}, s[{sBsp}:{sBsp+3}], s{sT} offen
    buffer_load_ushort v{vBs+1}, v{vT1}, s[{sBsp}:{sBsp+3}], s{sT} offen offset:64
    s_add_u32 s{sT}, s{sWoff}, 57344
    buffer_load_dwordx4 v[{vZ1}:{vZ1+3}], v{vL16}, s[{sWS}:{sWS+3}], s{sWoff} offen
    buffer_load_dwordx4 v[{vZ1+4}:{vZ1+7}], v{vL16}, s[{sWS}:{sWS+3}], s{sWoff} offen offset:1024
    buffer_load_dwordx4 v[{vZ1+8}:{vZ1+11}], v{vL16}, s[{sWS}:{sWS+3}], s{sT} offen
    buffer_load_dwordx4 v[{vZ1+12}:{vZ1+15}], v{vL16}, s[{sWS}:{sWS+3}], s{sT} offen offset:1024
    s_waitcnt vmcnt(0)
    v_lshlrev_b32 v{vBs}, 16, v{vBs}
    v_lshlrev_b32 v{vBs+1}, 16, v{vBs+1}
    """)
    a.nop(16)
    for i2 in range(2):
        for e in range(2):
            g = 2 * i2 + e
            acc = vAcc + 8 * g
            for d in range(4):
                z = vZ1 + 4 * g + d
                a(f"""
                v_lshlrev_b32 v{vTt+2*d}, 16, v{z}
                v_and_b32 v{vTt+2*d+1}, s{sMask}, v{z}
                v_add_f32 v{acc+2*d}, v{acc+2*d}, v{vBs+i2}
                v_add_f32 v{acc+2*d+1}, v{acc+2*d+1}, v{vBs+i2}
                v_mul_f32 v{acc+2*d}, v{acc+2*d}, v{vTt+2*d}
                v_mul_f32 v{acc+2*d+1}, v{acc+2*d+1}, v{vTt+2*d+1}
                v_cvt_pk_bf16_f32 v{vPk+4*g+d}, v{acc+2*d}, v{acc+2*d+1}
                """)
            a(f"s_add_u32 s{sT}, s{sZoff}, {90112*i2}")
            a(f"buffer_store_dwordx4 v[{vPk+4*g}:{vPk+4*g+3}], v{vL16}, s[{sWS}:{sWS+3}], s{sT} offen offset:{1024*e}")
    k2fin(a, 6)


def role_wt(a, opts):
    sWS = 8
    sWw = 12
    sWave, sKg, sT, sT2, sL = 24, 25, 26, 27, 28
    vLane, vT1, vT2, vT3, vL16, vTa = 1, 2, 3, 4, 5, 6
    vD = 16
    a.c("==== weight transpose role")
    a(f"""
    s_lshl_b32 s{sKg}, s3, 2
    s_add_u32 s{sKg}, s{sKg}, s{sWave}
    s_cmp_ge_u32 s{sKg}, 88
    s_cbranch_scc1 L_k2_end
    s_cmp_lt_u32 s{sKg}, 32
    s_cselect_b32 s{sWw}, s44, s46
    s_cselect_b32 s{sWw+1}, s45, s47
    s_mov_b32 s{sWw+2}, {896*1024}
    s_cmov_b32 s{sWw+2}, {512*1024}
    s_cselect_b32 s{sT}, 0, 32
    s_and_b32 s{sWw+1}, s{sWw+1}, 0xffff
    s_mov_b32 s{sWw+3}, 0x20000
    s_sub_u32 s{sT}, s{sKg}, s{sT}
    s_lshl_b32 s{sT}, s{sT}, 14
    s_lshl_b32 s{sL}, s{sWave}, 14
    v_lshlrev_b32 v{vL16}, 4, v{vLane}
    """)
    for r in range(16):
        if r % 4 == 0:
            a(f"s_add_u32 m0, s{sL}, {r*1024}")
            a(f"s_add_u32 s{sT2}, s{sT}, {r*1024}")
        a(f"buffer_load_dwordx4 v{vL16}, s[{sWw}:{sWw+3}], s{sT2} offen offset:{(r%4)*1024} lds")
    a(f"""
    v_lshrrev_b32 v{vT1}, 5, v{vLane}
    v_bfe_u32 v{vT2}, v{vLane}, 2, 2
    v_lshl_add_u32 v{vT1}, v{vT1}, 2, v{vT2}
    v_lshlrev_b32 v{vT1}, 10, v{vT1}
    v_bfe_u32 v{vT2}, v{vLane}, 4, 1
    v_lshl_add_u32 v{vT1}, v{vT2}, 5, v{vT1}
    v_and_b32 v{vT2}, 1, v{vLane}
    v_lshl_add_u32 v{vT1}, v{vT2}, 4, v{vT1}
    v_bfe_u32 v{vT2}, v{vLane}, 1, 1
    v_lshl_add_u32 v{vT1}, v{vT2}, 3, v{vT1}
    v_add_u32 v{vTa}, s{sL}, v{vT1}
    s_lshl_b32 s{sT}, s{sKg}, 10
    s_add_u32 s{sT}, s{sT}, {WF}
    s_waitcnt vmcnt(0)
    """)
    for nt in range(16):
        a(f"ds_read_b64_tr_b16 v[{vD+4*nt}:{vD+4*nt+1}], v{vTa} offset:{64*nt}")
        a(f"ds_read_b64_tr_b16 v[{vD+4*nt+2}:{vD+4*nt+3}], v{vTa} offset:{64*nt+8192}")
    a("s_waitcnt lgkmcnt(0)")
    for nt in range(16):
        a(f"buffer_store_dwordx4 v[{vD+4*nt}:{vD+4*nt+3}], v{vL16}, s[{sWS}:{sWS+3}], s{sT} offen")
        a(f"s_add_u32 s{sT}, s{sT}, 90112")
    k2fin(a, 1)


def gen_k2(a, which):
    opts = {}
    for w in which:
        if w.startswith('prio'):
            opts['prio_attn'] = int(w[4:])
        if w == 'fb':
            opts['force_fallback'] = True
    name = 'k2_kernel'
    a.kernel_begin(name)
    a(f"""
    s_cmp_ge_u32 s2, 512
    s_cbranch_scc1 L_k2_end
    s_load_dwordx2 s[4:5], s[0:1], 80
    s_load_dwordx4 s[48:51], s[0:1], 40
    s_load_dwordx2 s[52:53], s[0:1], 72
    s_load_dwordx2 s[44:45], s[0:1], 16
    s_load_dwordx2 s[46:47], s[0:1], 56
    """)
    stamp(a, 0)
    a(f"""
    v_lshrrev_b32 v2, 6, v0
    v_and_b32 v1, 63, v0
    s_nop 0
    v_readfirstlane_b32 s24, v2
    s_waitcnt lgkmcnt(0)
    """)
    a.srd(8, 4, WS_SIZE)
    a.srd(12, 48, 2048 * 4096)
    a.srd(16, 50, 4096)
    a.srd(20, 52, 256)
    a(f"""
    s_cmp_lt_u32 s2, 256
    s_cbranch_scc1 L_k2_attn
    s_cmp_lt_u32 s2, 480
    s_cbranch_scc1 L_k2_sp
    s_sub_u32 s3, s2, 480
    """)
    role_wt(a, opts)
    a.label('L_k2_sp')
    a("s_sub_u32 s3, s2, 256")
    role_spatial(a, opts)
    a.label('L_k2_attn')
    role_attn(a, opts)
    a.label('L_k2_end')
    a("s_endpgm")
    a.kernel_end(name, 256, 102)
    return ["; @launch kernel=k2_kernel grid=(512,1,1) block=(256,1,1) lds=81920"]
```

```python
from asmlib import *
from gen_k1 import QF, KF, VF, Z1F, Z2F, Z2N, AF, ST, WF, WS_SIZE, QSCALE, GC1, GC2


def ln_scalars(a, vS, vQ, vNM, vRI, vT, sMask, n):
    a(f"""
    v_mul_f32 v{vS}, {f2u(1.0/n):#x}, v{vS}
    v_mul_f32 v{vQ}, {f2u(1.0/n):#x}, v{vQ}
    v_fma_f32 v{vQ}, -v{vS}, v{vS}, v{vQ}
    v_max_f32 v{vQ}, 0, v{vQ}
    v_cvt_pk_bf16_f32 v{vT}, v{vS}, v{vQ}
    v_lshlrev_b32 v{vNM}, 16, v{vT}
    v_and_b32 v{vQ}, s{sMask}, v{vT}
    v_add_f32 v{vQ}, {f2u(1e-5):#x}, v{vQ}
    v_cvt_pk_bf16_f32 v{vQ}, v{vQ}, v{vQ}
    v_and_b32 v{vQ}, s{sMask}, v{vQ}
    v_sqrt_f32 v{vQ}, v{vQ}
    s_nop 0
    v_cvt_pk_bf16_f32 v{vQ}, v{vQ}, v{vQ}
    v_and_b32 v{vQ}, s{sMask}, v{vQ}
    v_rcp_f32 v{vRI}, v{vQ}
    s_nop 0
    v_fma_f32 v{vS}, -v{vQ}, v{vRI}, 1.0
    v_fma_f32 v{vRI}, v{vS}, v{vRI}, v{vRI}
    v_mul_f32 v{vNM}, v{vNM}, v{vRI}
    v_xor_b32 v{vNM}, 0x80000000, v{vNM}
    """)


def gen_k1b(a, name='k1_kernel'):
    a.kernel_begin(name)
    L_end = 'L_k1_end'
    sX, sWz, sWq, sWS, sSp, sDbg = 12, 16, 20, 24, 28, 32
    sWave, sRt, sCh, sRb, sCb, sQu, sHasQ, sT = 36, 37, 38, 39, 40, 41, 42, 43
    sT2, sCurZ, sCurQ, sLdsW, sTT, sOnes, sMask, sBase, sStQ, sQ4, sStrQ, sColQ = 52, 53, 54, 55, 56, 57, 58, 59, 60, 61, 62, 63
    sGr = 3
    vLane, vT1, vT2, vT3 = 1, 2, 3, 4
    vXoff, vWoffZ, vWoffQ, vLdsWr = 5, 6, 7, 8
    vAr = 9
    vTr = 13
    vL16, vVoff, vTouch = 19, 20, 21
    vM = 22
    vB = 32
    vAccZ, vAccQ = 64, 96
    vXr = 64
    vA = 128

    a(f"""
    s_cmp_ge_u32 s2, 256
    s_cbranch_scc1 {L_end}
    s_load_dwordx4 s[4:7], s[0:1], 0
    s_load_dwordx4 s[8:11], s[0:1], 32
    s_load_dwordx4 s[48:51], s[0:1], 72
    s_load_dwordx2 s[44:45], s[0:1], 16
    s_load_dwordx2 s[46:47], s[0:1], 56
    """)
    stamp(a, 0)
    a(f"""
    v_lshrrev_b32 v{vT1}, 6, v0
    v_and_b32 v{vLane}, 63, v0
    s_and_b32 s{sT}, s2, 7
    v_readfirstlane_b32 s{sWave}, v{vT1}
    s_lshr_b32 s{sT2}, s2, 3
    s_and_b32 s{sQ4}, s{sT2}, 3
    s_lshr_b32 s{sRb}, s{sT}, 1
    s_lshl_b32 s{sRb}, s{sRb}, 2
    s_add_u32 s{sRb}, s{sRb}, s{sQ4}
    s_and_b32 s{sCb}, s{sT}, 1
    s_mul_i32 s{sCb}, s{sCb}, 7
    s_lshr_b32 s{sT}, s{sT2}, 2
    s_add_u32 s{sCb}, s{sCb}, s{sT}
    s_and_b32 s{sRt}, s{sWave}, 3
    s_lshr_b32 s{sCh}, s{sWave}, 2
    v_lshlrev_b32 v{vL16}, 4, v{vLane}
    s_cmp_ge_u32 s{sT2}, 28
    s_cbranch_scc1 L_k1_helper
    """)
    a.c("x load offset: (rb*128 + 16*wave + L/8)*1024 + (L%8)*16")
    a(f"""
    s_lshl_b32 s{sT}, s{sRb}, 7
    s_lshl_b32 s{sT2}, s{sWave}, 4
    s_add_u32 s{sT}, s{sT}, s{sT2}
    v_lshrrev_b32 v{vT1}, 3, v{vLane}
    v_add_u32 v{vT2}, s{sT}, v{vT1}
    v_lshlrev_b32 v{vT2}, 10, v{vT2}
    v_and_b32 v{vT3}, 7, v{vLane}
    v_lshl_add_u32 v{vXoff}, v{vT3}, 4, v{vT2}
    s_mov_b32 s{sT}, 8192
    s_waitcnt lgkmcnt(0)
    """)
    a.srd(sX, 4, 2048 * 1024)
    for g in range(2):
        for i in range(8):
            r = vXr + 32 * g + 4 * i
            so = "0" if g == 0 else f"s{sT}"
            a(f"buffer_load_dwordx4 v[{r}:{r+3}], v{vXoff}, s[{sX}:{sX+3}], {so} offen offset:{128*i}")
    a.c("units: qu = cb<5 ? cb : cb-2 ; hasq = !(cb==5||cb==6)")
    a(f"""
    s_sub_u32 s{sQu}, s{sCb}, 2
    s_cmp_lt_u32 s{sCb}, 5
    s_cselect_b32 s{sQu}, s{sCb}, s{sQu}
    s_sub_u32 s{sT}, s{sCb}, 5
    s_cmp_lt_u32 s{sT}, 2
    s_cselect_b32 s{sHasQ}, 0, 1
    s_cselect_b32 s{sWq}, s8, s6
    s_cselect_b32 s{sWq+1}, s9, s7
    s_mov_b32 s{sWq+2}, {512*3072}
    s_cmov_b32 s{sWq+2}, {512*3584}
    s_mov_b32 s{sStrQ}, 3072
    s_cmov_b32 s{sStrQ}, 3584
    s_cselect_b32 s{sColQ}, s{sCb}, s{sQu}
    s_and_b32 s{sWq+1}, s{sWq+1}, 0xffff
    s_mov_b32 s{sWq+3}, 0x20000
    s_lshl_b32 s{sColQ}, s{sColQ}, 8
    s_lshl_b32 s{sStQ}, s{sStrQ}, 5
    """)
    a.srd(sWz, 8, 512 * 3584)
    a.srd(sWS, 50, WS_SIZE)
    a.srd(sSp, 10, 2048 * 4096)
    a.srd(sDbg, 48, 256)
    a(f"""
    s_mul_i32 s{sCurZ}, s{sWave}, {4*3584}
    s_lshl_b32 s{sT}, s{sCb}, 8
    s_add_u32 s{sCurZ}, s{sCurZ}, s{sT}
    s_mul_i32 s{sCurQ}, s{sWave}, s{sStrQ}
    s_lshl_b32 s{sCurQ}, s{sCurQ}, 2
    s_add_u32 s{sCurQ}, s{sCurQ}, s{sColQ}
    s_lshl_b32 s{sLdsW}, s{sWave}, 10
    v_lshrrev_b32 v{vT1}, 4, v{vLane}
    v_and_b32 v{vT2}, 15, v{vLane}
    v_lshlrev_b32 v{vT3}, 2, v{vT1}
    v_xor_b32 v{vT2}, v{vT2}, v{vT3}
    v_lshlrev_b32 v{vT2}, 4, v{vT2}
    s_movk_i32 s{sT}, 3584
    v_mad_u32_u24 v{vWoffZ}, v{vT1}, s{sT}, v{vT2}
    v_mad_u32_u24 v{vWoffQ}, v{vT1}, s{sStrQ}, v{vT2}
    """)

    def slot(c):
        return (c + 16) % 20

    ops = []

    def dma(c):
        if c < 16:
            a(f"""
            s_add_u32 m0, s{sLdsW}, {slot(c)*8192}
            s_nop 0
            buffer_load_dwordx4 v{vWoffZ}, s[{sWz}:{sWz+3}], s{sCurZ} offen lds
            s_add_u32 s{sCurZ}, s{sCurZ}, {32*3584}
            """)
        else:
            a(f"""
            s_add_u32 m0, s{sLdsW}, {slot(c)*8192}
            s_nop 0
            buffer_load_dwordx4 v{vWoffQ}, s[{sWq}:{sWq+3}], s{sCurQ} offen lds
            s_add_u32 s{sCurQ}, s{sCurQ}, s{sStQ}
            """)
        ops.append(c)

    def wait_chunk(c):
        n = len(ops) - 1 - ops.index(c)
        a(f"s_waitcnt vmcnt({n})")

    for c in range(4):
        dma(c)
    a.c("clear own granule: rec = ST + (cb<7?0x40000:0) + ((rb*4+rt)*2+ch)*2048 + r*64 + (cb%7)*8")
    a(f"""
    s_lshl_b32 s{sTT}, s{sRb}, 2
    s_add_u32 s{sTT}, s{sTT}, s{sRt}
    s_lshl_b32 s{sGr}, s{sTT}, 12
    s_add_u32 s{sGr}, s{sGr}, {ST}
    s_lshl_b32 s{sT}, s{sCh}, 11
    s_add_u32 s{sT}, s{sT}, s{sGr}
    s_lshl_b32 s{sT2}, s{sCb}, 3
    s_add_u32 s{sT}, s{sT}, s{sT2}
    s_cmp_lt_u32 s{sCb}, 7
    s_mov_b32 s{sT2}, {(-56) & 0xffffffff:#x}
    s_cmov_b32 s{sT2}, 0x40000
    s_add_u32 s{sBase}, s{sT}, s{sT2}
    v_and_b32 v{vT1}, 31, v{vLane}
    v_lshlrev_b32 v{vM+8}, 6, v{vT1}
    v_mov_b32 v{vB+30}, 0
    v_mov_b32 v{vB+31}, -1
    buffer_store_dwordx2 v[{vB+30}:{vB+31}], v{vM+8}, s[{sWS}:{sWS+3}], s{sBase} offen sc0 sc1
    """)
    sPub = 47
    a(f"s_mov_b32 s{sPub}, s{sBase}")
    NAFTER = 4 + 1
    a.c("LDS write addr: (w/2)*32768 + (c/2)*1024 + (c%2)*512 + (16*(w%2) + (row8^c))*16")
    a(f"""
    s_mov_b32 s{sOnes}, 0x3f803f80
    s_mov_b32 s{sMask}, 0xffff0000
    v_lshrrev_b32 v{vT1}, 3, v{vLane}
    v_and_b32 v{vT2}, 7, v{vLane}
    v_xor_b32 v{vT1}, v{vT1}, v{vT2}
    v_lshlrev_b32 v{vT1}, 4, v{vT1}
    v_lshl_add_u32 v{vT1}, v{vT2}, 9, v{vT1}
    s_lshr_b32 s{sT}, s{sWave}, 1
    s_lshl_b32 s{sT}, s{sT}, 15
    s_and_b32 s{sT2}, s{sWave}, 1
    s_lshl_b32 s{sT2}, s{sT2}, 8
    s_add_u32 s{sT}, s{sT}, s{sT2}
    v_add_u32 v{vLdsWr}, s{sT}, v{vT1}
    """)
    a.c("A read addrs: rt*32768 + hf*512 + ((r ^ (2q+hf))*16) + q*1024")
    a(f"""
    v_lshrrev_b32 v{vT1}, 5, v{vLane}
    v_and_b32 v{vT2}, 31, v{vLane}
    v_xor_b32 v{vT2}, v{vT2}, v{vT1}
    s_lshl_b32 s{sT}, s{sRt}, 15
    v_lshl_add_u32 v{vT1}, v{vT1}, 9, s{sT}
    """)
    for q in range(4):
        a(f"v_xor_b32 v{vT3}, {2*q}, v{vT2}")
        a(f"v_lshl_add_u32 v{vAr+q}, v{vT3}, 4, v{vT1}")
        if q:
            a(f"v_add_u32 v{vAr+q}, {1024*q}, v{vAr+q}")
    a.c("tr addr(ct) = (8hf + r)*256 + (ct^r)*64 + c16*32 + cc*8 (+ window*65536)")
    a(f"""
    v_lshrrev_b32 v{vT1}, 5, v{vLane}
    v_bfe_u32 v{vT2}, v{vLane}, 2, 2
    v_lshl_add_u32 v{vT1}, v{vT1}, 3, v{vT2}
    v_lshlrev_b32 v{vT1}, 8, v{vT1}
    v_bfe_u32 v{vT3}, v{vLane}, 4, 1
    v_lshl_add_u32 v{vT1}, v{vT3}, 5, v{vT1}
    v_and_b32 v{vT3}, 3, v{vLane}
    v_lshl_add_u32 v{vT1}, v{vT3}, 3, v{vT1}
    s_lshl_b32 s{sT}, s{sCh}, 1
    v_xor_b32 v{vT2}, s{sT}, v{vT2}
    """)
    for ct in range(2):
        a(f"v_xor_b32 v{vT3}, {ct}, v{vT2}")
        a(f"v_lshl_add_u32 v{vTr+ct}, v{vT3}, 6, v{vT1}")
        a(f"v_add_u32 v{vTr+2+ct}, 0x10000, v{vTr+ct}")
        a(f"v_add_u32 v{vTr+4+ct}, 0x20000, v{vTr+ct}")
    a(f"""
    v_bfe_u32 v{vT1}, v{vLane}, 4, 1
    v_lshlrev_b32 v{vT1}, 16, v{vT1}
    v_lshrrev_b32 v{vT2}, 5, v{vLane}
    v_lshl_add_u32 v{vT1}, v{vT2}, 8, v{vT1}
    v_and_b32 v{vT2}, 15, v{vLane}
    v_lshl_add_u32 v{vVoff}, v{vT2}, 4, v{vT1}
    """)
    PFG = 1 if 'pf1' in a.flags else 0
    vS, vQ = vM, vM + 2
    vNM, vRI = vM + 4, vM + 6
    for g in range(2):
        for d in range(2):
            a(f"v_mov_b32 v{vS+d}, 0\nv_mov_b32 v{vQ+d}, 0")
        for i in range(8):
            if i % 2 == 0:
                a(f"s_waitcnt vmcnt({NAFTER + 16 - (8*g + i + 2)})")
            for d in range(4):
                x = vXr + 32 * g + 4 * i + d
                a(f"v_dot2c_f32_bf16 v{vS+d%2}, s{sOnes}, v{x}")
                a(f"v_dot2c_f32_bf16 v{vQ+d%2}, v{x}, v{x}")
        if g == PFG:
            a.c("W L2 prefetch (z unit): rows 128*q4 + 16*w + 4i")
            a(f"""
            s_lshl_b32 s{sT}, s{sQ4}, 3
            s_add_u32 s{sT}, s{sT}, s{sWave}
            s_mul_i32 s{sT}, s{sT}, {16*3584}
            s_lshl_b32 s{sT2}, s{sCb}, 8
            s_add_u32 s{sT}, s{sT}, s{sT2}
            """)
            for i in range(4):
                a(f"buffer_load_dwordx4 v[{vA+4*i}:{vA+4*i+3}], v{vWoffZ}, s[{sWz}:{sWz+3}], s{sT} offen")
                a(f"s_add_u32 s{sT}, s{sT}, {4*3584}")
            NAFTER += 4
        a.nop(3)
        if g == 0:
            stamp(a, 1)
        a(f"""
        v_add_f32 v{vS}, v{vS}, v{vS+1}
        v_add_f32 v{vQ}, v{vQ}, v{vQ+1}
        s_nop 1
        v_add_f32_dpp v{vS+1}, v{vS}, v{vS} quad_perm:[1,0,3,2] row_mask:0xf bank_mask:0xf
        v_add_f32_dpp v{vQ+1}, v{vQ}, v{vQ} quad_perm:[1,0,3,2] row_mask:0xf bank_mask:0xf
        s_nop 1
        v_add_f32_dpp v{vS}, v{vS+1}, v{vS+1} quad_perm:[2,3,0,1] row_mask:0xf bank_mask:0xf
        v_add_f32_dpp v{vQ}, v{vQ+1}, v{vQ+1} quad_perm:[2,3,0,1] row_mask:0xf bank_mask:0xf
        s_nop 1
        v_add_f32_dpp v{vS+1}, v{vS}, v{vS} row_half_mirror row_mask:0xf bank_mask:0xf
        v_add_f32_dpp v{vQ+1}, v{vQ}, v{vQ} row_half_mirror row_mask:0xf bank_mask:0xf
        """)
        ln_scalars(a, vS + 1, vQ + 1, vNM, vRI, vS, sMask, 512)
        for i in range(8):
            xs = [vXr + 32 * g + 4 * i + d for d in range(4)]
            tb = vB + 8 * (i % 2)
            for d in range(4):
                a(f"v_lshlrev_b32 v{tb+2*d}, 16, v{xs[d]}")
                a(f"v_and_b32 v{tb+2*d+1}, s{sMask}, v{xs[d]}")
            for d in range(4):
                a(f"v_pk_fma_f32 v[{tb+2*d}:{tb+2*d+1}], v[{tb+2*d}:{tb+2*d+1}], v[{vRI}:{vRI+1}], v[{vNM}:{vNM+1}] op_sel_hi:[1,0,0]")
            for d in range(4):
                a(f"v_cvt_pk_bf16_f32 v{xs[d]}, v{tb+2*d}, v{tb+2*d+1}")
            a(f"ds_write_b128 v{vLdsWr}, v[{xs[0]}:{xs[3]}] offset:{4096*i + 128*g}")
    a("s_waitcnt vmcnt(0) lgkmcnt(0)\ns_barrier")
    stamp(a, 2)
    for s in range(32):
        a(f"ds_read_b128 v[{vA+4*s}:{vA+4*s+3}], v{vAr+s%4} offset:{4096*(s//4)}")
    a("s_waitcnt lgkmcnt(0)\ns_barrier")
    stamp(a, 3)
    ops.clear()

    def reads(c):
        base = slot(c) * 8192
        w = base // 65536
        bs = vB + 16 * (c % 2)
        for ks in range(2):
            for ct in range(2):
                for hr in range(2):
                    off = base - w * 65536 + (16 * ks + 4 * hr) * 256
                    r = bs + 8 * ks + 4 * ct + 2 * hr
                    a(f"ds_read_b64_tr_b16 v[{r}:{r+1}], v{vTr+2*w+ct} offset:{off}")

    def unit(u, normal, sched_dma, syncs, acc):
        c0 = 16 * u
        reads(c0)
        for m in range(16):
            c = c0 + m
            if m + 1 < 16:
                if (c + 1) in syncs:
                    need = syncs[c + 1]
                    if need == 'all':
                        a("s_waitcnt vmcnt(0)")
                    else:
                        wait_chunk(need)
                    a("s_barrier")
                    if post_sync.get(c + 1):
                        post_sync[c + 1]()
                reads(c + 1)
                a("s_waitcnt lgkmcnt(8)")
            else:
                a("s_waitcnt lgkmcnt(0)")
            bs = vB + 16 * (c % 2)
            dl = list(sched_dma.get(c, []))
            for ks in range(2):
                for ct in range(2):
                    s = 2 * m + ks
                    A = f"v[{vA+4*s}:{vA+4*s+3}]"
                    B = f"v[{bs+8*ks+4*ct}:{bs+8*ks+4*ct+3}]"
                    D = f"v[{acc+16*ct}:{acc+16*ct+15}]"
                    C = D if s > 0 else "0"
                    if normal:
                        a(f"v_mfma_f32_32x32x16_bf16 {D}, {A}, {B}, {C}")
                    else:
                        a(f"v_mfma_f32_32x32x16_bf16 {D}, {B}, {A}, {C}")
                    if dl:
                        dma(dl.pop(0))
            assert not dl

    post_sync = {}
    for c in range(4, 8):
        dma(c)
    unit(0, False, {0: [8, 9, 10], 1: [11, 12, 13], 2: [14, 15, 16], 3: [17, 18, 19], 6: [20, 21, 22, 23], 12: [24, 25, 26, 27]},
         {4: 5, 6: 7, 8: 11, 12: 15}, vAccZ)
    stamp(a, 4)
    a("s_waitcnt vmcnt(0)")
    a.c("arrive on cleared counter (wave 0 of z2 WGs) ; w_sp touch")
    a(f"""
    s_lshl_b32 s{sT}, s2, 3
    s_add_u32 s{sT}, s{sT}, s{sWave}
    s_lshl_b32 s{sT}, s{sT}, 12
    v_lshlrev_b32 v{vT1}, 6, v{vLane}
    buffer_load_dword v{vTouch}, v{vT1}, s[{sSp}:{sSp+3}], s{sT} offen
    s_cmp_lt_u32 s{sCb}, 7
    s_cbranch_scc1 L_k1_noarr
    s_cmp_lg_u32 s{sWave}, 0
    s_cbranch_scc1 L_k1_noarr
    s_lshl_b32 s{sT}, s{sRb}, 2
    v_mov_b32 v{vT1}, 1
    s_mov_b64 exec, 1
    buffer_atomic_add v{vT1}, off, s[{sDbg}:{sDbg+3}], s{sT} sc1
    s_mov_b64 exec, -1
    """)
    a.label('L_k1_noarr')
    vC1, vC2, vOne = vM, vM + 2, vM + 4
    vSs, vSq = vB, vB + 2
    a(f"""
    v_mov_b32 v{vC1}, {f2u(GC1):#x}
    v_mov_b32 v{vC2}, {f2u(GC2):#x}
    v_mov_b32 v{vOne}, 1.0
    s_mul_i32 s{sBase}, s{sTT}, 57344
    s_lshl_b32 s{sT}, s{sCb}, 13
    s_add_u32 s{sBase}, s{sBase}, s{sT}
    s_lshl_b32 s{sT}, s{sCh}, 12
    s_add_u32 s{sBase}, s{sBase}, s{sT}
    """)
    a.nop(8)
    G = vAccQ
    for g in range(4):
        t = G + 8 * g
        h = vAccZ + 8 * g
        for d in range(4):
            a(f"v_pk_mul_f32 v[{t+2*d}:{t+2*d+1}], v[{h+2*d}:{h+2*d+1}], v[{h+2*d}:{h+2*d+1}]")
        for d in range(4):
            a(f"v_pk_fma_f32 v[{t+2*d}:{t+2*d+1}], v[{t+2*d}:{t+2*d+1}], v[{vC2}:{vC2+1}], v[{vC1}:{vC1+1}] op_sel_hi:[1,0,0]")
        for d in range(4):
            a(f"v_pk_mul_f32 v[{t+2*d}:{t+2*d+1}], v[{t+2*d}:{t+2*d+1}], v[{h+2*d}:{h+2*d+1}]")
        for d in range(8):
            a(f"v_exp_f32 v{t+d}, v{t+d}")
        for d in range(4):
            a(f"v_pk_add_f32 v[{t+2*d}:{t+2*d+1}], v[{t+2*d}:{t+2*d+1}], v[{vOne}:{vOne+1}] op_sel_hi:[1,0]")
        for d in range(8):
            a(f"v_rcp_f32 v{t+d}, v{t+d}")
        if g:
            pass
        a("s_nop 0")
        for d in range(4):
            a(f"v_pk_mul_f32 v[{h+2*d}:{h+2*d+1}], v[{t+2*d}:{t+2*d+1}], v[{h+2*d}:{h+2*d+1}]")
    a(f"""
    s_cmp_ge_u32 s{sCb}, 7
    s_cbranch_scc1 L_k1_z2pub
    s_add_u32 s{sBase}, s{sBase}, {Z1F}
    """)
    P = vB
    for g in range(4):
        for d in range(4):
            a(f"v_cvt_pk_bf16_f32 v{P+4*g+d}, v{vAccZ+8*g+2*d}, v{vAccZ+8*g+2*d+1}")
        a(f"buffer_store_dwordx4 v[{P+4*g}:{P+4*g+3}], v{vL16}, s[{sWS}:{sWS+3}], s{sBase} offen offset:{1024*g}")
    a(f"""
    s_cmp_eq_u32 s{sHasQ}, 0
    s_cbranch_scc1 L_k1_fin0
    s_nop 4
    s_branch L_k1_u2
    """)
    a.label('L_k1_z2pub')
    a(f"""
    v_pk_add_f32 v[{vSs}:{vSs+1}], v[{vAccZ}:{vAccZ+1}], v[{vAccZ+2}:{vAccZ+3}]
    v_pk_mul_f32 v[{vSq}:{vSq+1}], v[{vAccZ}:{vAccZ+1}], v[{vAccZ}:{vAccZ+1}]
    v_pk_add_f32 v[{vSs+4}:{vSs+5}], v[{vAccZ+4}:{vAccZ+5}], v[{vAccZ+6}:{vAccZ+7}]
    v_pk_mul_f32 v[{vSq+4}:{vSq+5}], v[{vAccZ+2}:{vAccZ+3}], v[{vAccZ+2}:{vAccZ+3}]
    """)
    for p in range(4, 16):
        o = 4 * (p % 2)
        a(f"v_pk_add_f32 v[{vSs+o}:{vSs+o+1}], v[{vSs+o}:{vSs+o+1}], v[{vAccZ+2*p}:{vAccZ+2*p+1}]")
    for p in range(2, 16):
        o = 4 * (p % 2)
        a(f"v_pk_fma_f32 v[{vSq+o}:{vSq+o+1}], v[{vAccZ+2*p}:{vAccZ+2*p+1}], v[{vAccZ+2*p}:{vAccZ+2*p+1}], v[{vSq+o}:{vSq+o+1}]")
    a(f"""
    v_pk_add_f32 v[{vSs}:{vSs+1}], v[{vSs}:{vSs+1}], v[{vSs+4}:{vSs+5}]
    v_pk_add_f32 v[{vSq}:{vSq+1}], v[{vSq}:{vSq+1}], v[{vSq+4}:{vSq+5}]
    v_add_f32 v{vSs}, v{vSs}, v{vSs+1}
    v_add_f32 v{vSq}, v{vSq}, v{vSq+1}
    v_mov_b32 v{vSs+1}, v{vSs}
    v_mov_b32 v{vSq+1}, v{vSq}
    s_nop 1
    v_permlane32_swap_b32 v{vSs}, v{vSs+1}
    v_permlane32_swap_b32 v{vSq}, v{vSq+1}
    s_nop 1
    v_add_f32 v{vSs}, v{vSs}, v{vSs+1}
    v_add_f32 v{vSs+1}, v{vSq}, v{vSq+1}
    v_and_b32 v{vSs+1}, 0x7fffffff, v{vSs+1}
    buffer_store_dwordx2 v[{vSs}:{vSs+1}], v{vM+8}, s[{sWS}:{sWS+3}], s{sPub} offen sc0 sc1
    s_add_u32 s{sPub}, s{sBase}, {Z2N - 7*8192}
    s_nop 4
    """)
    a.label('L_k1_u2')
    a("s_barrier")
    stamp(a, 5)
    ops.clear()
    for c in range(28, 32):
        dma(c)
    vCnt = vM + 9

    def cnt_load():
        a(f"""
        s_lshl_b32 s{sT}, s{sRb}, 2
        buffer_load_dword v{vCnt}, off, s[{sDbg}:{sDbg+3}], s{sT} sc1
        """)
    post_sync[28] = cnt_load
    a(f"""
    s_cmp_ge_u32 s{sQu}, 8
    s_cbranch_scc1 L_k1_vtype
    """)

    vG = vA

    def poll_issue(tag):
        a(f"""
        s_cmp_lt_u32 s{sCb}, 7
        s_cbranch_scc1 L_k1_np{tag}
        """)
        a.label(f'L_k1_cw{tag}')
        a(f"""
        s_waitcnt vmcnt(0)
        v_readfirstlane_b32 s{sT2}, v{vCnt}
        s_nop 3
        s_cmp_ge_u32 s{sT2}, 7
        s_cbranch_scc1 L_k1_cok{tag}
        s_lshl_b32 s{sT}, s{sRb}, 2
        buffer_load_dword v{vCnt}, off, s[{sDbg}:{sDbg+3}], s{sT} sc1
        s_branch L_k1_cw{tag}
        """)
        a.label(f'L_k1_cok{tag}')
        gran_loads()
        a.label(f'L_k1_np{tag}')

    def gran_loads():
        a(f"""
        v_lshlrev_b32 v{vT1}, 6, v{vLane}
        buffer_load_dwordx4 v[{vG}:{vG+3}], v{vT1}, s[{sWS}:{sWS+3}], s{sGr} offen sc1
        buffer_load_dwordx4 v[{vG+4}:{vG+7}], v{vT1}, s[{sWS}:{sWS+3}], s{sGr} offen offset:16 sc1
        buffer_load_dwordx4 v[{vG+8}:{vG+11}], v{vT1}, s[{sWS}:{sWS+3}], s{sGr} offen offset:32 sc1
        buffer_load_dwordx2 v[{vG+12}:{vG+13}], v{vT1}, s[{sWS}:{sWS+3}], s{sGr} offen offset:48 sc1
        """)

    sv = list(ops)
    unit(1, False, {}, {28: 'all'}, vAccQ)
    stamp(a, 6)
    a.nop(4)
    poll_issue('t')
    a.c("Q or K: base = QF + qu*8*65536 + ch*4*65536 + tt*1024")
    assert KF - QF == 4 * 8 * 65536 and QF == 0
    a(f"""
    s_lshl_b32 s{sBase}, s{sQu}, 19
    s_lshl_b32 s{sT}, s{sTT}, 10
    s_add_u32 s{sBase}, s{sBase}, s{sT}
    s_lshl_b32 s{sT}, s{sCh}, 18
    s_add_u32 s{sBase}, s{sBase}, s{sT}
    s_mov_b32 s{sT2}, {f2u(QSCALE):#x}
    """)
    a.nop(12)
    a(f"""
    s_cmp_ge_u32 s{sQu}, 4
    s_cbranch_scc1 L_k1_noscale
    """)
    for i in range(32):
        a(f"v_mul_f32 v{vAccQ+i}, s{sT2}, v{vAccQ+i}")
    a.label('L_k1_noscale')
    for g in range(4):
        for d in range(4):
            a(f"v_cvt_pk_bf16_f32 v{P+4*g+d}, v{vAccQ+8*g+2*d}, v{vAccQ+8*g+2*d+1}")
        a(f"s_add_u32 s{sT}, s{sBase}, {g*65536}")
        a(f"buffer_store_dwordx4 v[{P+4*g}:{P+4*g+3}], v{vL16}, s[{sWS}:{sWS+3}], s{sT} offen")
    a("s_branch L_k1_z2fin")

    a.label('L_k1_vtype')
    ops[:] = sv
    unit(1, True, {}, {28: 'all'}, vAccQ)
    stamp(a, 6)
    a.nop(4)
    poll_issue('v')
    a(f"""
    s_sub_u32 s{sT}, s{sQu}, 8
    s_lshl_b32 s{sBase}, s{sT}, 19
    s_lshl_b32 s{sT}, s{sTT}, 10
    s_add_u32 s{sBase}, s{sBase}, s{sT}
    s_lshl_b32 s{sT}, s{sCh}, 18
    s_add_u32 s{sBase}, s{sBase}, s{sT}
    s_add_u32 s{sBase}, s{sBase}, {VF}
    """)
    a.nop(12)
    for g in range(4):
        ct, j = g // 2, g % 2
        for d in range(4):
            a(f"v_cvt_pk_bf16_f32 v{P+4*g+d}, v{vAccQ+8*g+2*d}, v{vAccQ+8*g+2*d+1}")
        a(f"s_add_u32 s{sT}, s{sBase}, {ct*2*65536}")
        a(f"buffer_store_dwordx4 v[{P+4*g}:{P+4*g+3}], v{vVoff}, s[{sWS}:{sWS+3}], s{sT} offen offset:{j*512}")

    a.label('L_k1_z2fin')
    a(f"""
    s_cmp_lt_u32 s{sCb}, 7
    s_cbranch_scc1 L_k1_fin
    s_waitcnt vmcnt(4)
    """)
    a.label('L_k1_gchk')
    a(f"""
    v_or3_b32 v{vT2}, v{vG+1}, v{vG+3}, v{vG+5}
    v_or3_b32 v{vT3}, v{vG+7}, v{vG+9}, v{vG+11}
    v_or3_b32 v{vT2}, v{vT2}, v{vT3}, v{vG+13}
    v_cmp_gt_i32 vcc, 0, v{vT2}
    s_nop 4
    s_cbranch_vccz L_k1_gok
    """)
    gran_loads()
    a(f"""
    s_waitcnt vmcnt(0)
    s_branch L_k1_gchk
    """)
    a.label('L_k1_gok')
    a(f"""
    v_pk_add_f32 v[{vG}:{vG+1}], v[{vG}:{vG+1}], v[{vG+2}:{vG+3}]
    v_pk_add_f32 v[{vG+4}:{vG+5}], v[{vG+4}:{vG+5}], v[{vG+6}:{vG+7}]
    v_pk_add_f32 v[{vG+8}:{vG+9}], v[{vG+8}:{vG+9}], v[{vG+10}:{vG+11}]
    v_pk_add_f32 v[{vG}:{vG+1}], v[{vG}:{vG+1}], v[{vG+12}:{vG+13}]
    v_pk_add_f32 v[{vG+4}:{vG+5}], v[{vG+4}:{vG+5}], v[{vG+8}:{vG+9}]
    v_pk_add_f32 v[{vG}:{vG+1}], v[{vG}:{vG+1}], v[{vG+4}:{vG+5}]
    v_mov_b32 v{vG+2}, v{vG}
    v_mov_b32 v{vG+3}, v{vG+1}
    s_nop 1
    v_permlane32_swap_b32 v{vG}, v{vG+2}
    v_permlane32_swap_b32 v{vG+1}, v{vG+3}
    s_nop 1
    v_add_f32 v{vG}, v{vG}, v{vG+2}
    v_add_f32 v{vG+1}, v{vG+1}, v{vG+3}
    """)
    ln_scalars(a, vG, vG + 1, vNM, vRI, vG + 2, sMask, 896)
    P2 = vB + 16
    for g in range(4):
        h = vAccZ + 8 * g
        for d in range(4):
            a(f"v_pk_fma_f32 v[{h+2*d}:{h+2*d+1}], v[{h+2*d}:{h+2*d+1}], v[{vRI}:{vRI+1}], v[{vNM}:{vNM+1}] op_sel_hi:[1,0,0]")
        for d in range(4):
            a(f"v_cvt_pk_bf16_f32 v{P2+4*g+d}, v{h+2*d}, v{h+2*d+1}")
        a(f"buffer_store_dwordx4 v[{P2+4*g}:{P2+4*g+3}], v{vL16}, s[{sWS}:{sWS+3}], s{sPub} offen offset:{1024*g}")
    a.label('L_k1_fin')
    if getattr(a, 'instr', False):
        a("s_waitcnt vmcnt(0)")
        stamp(a, 7)
        stamp_flush(a, 0, 8, 50, sWave, 8)
    a("s_endpgm")
    a.label('L_k1_fin0')
    a("s_waitcnt vmcnt(0)")
    a("s_endpgm")

    a.label('L_k1_helper')
    sWw = 12
    sKg, sL = 39, 40
    vTa = 6
    vD = 16
    a(f"""
    s_waitcnt lgkmcnt(0)
    """)
    a.srd(sWS, 50, WS_SIZE)
    a.srd(sSp, 10, 2048 * 4096)
    a(f"""
    s_and_b32 s{sT}, s2, 7
    s_lshl_b32 s{sT}, s{sT}, 2
    s_add_u32 s{sT}, s{sT}, s{sQ4}
    s_lshl_b32 s{sKg}, s{sWave}, 5
    s_add_u32 s{sKg}, s{sKg}, s{sT}
    s_cmp_ge_u32 s{sKg}, 88
    s_cbranch_scc1 L_k1_htouch
    s_cmp_lt_u32 s{sKg}, 32
    s_cselect_b32 s{sWw}, s44, s46
    s_cselect_b32 s{sWw+1}, s45, s47
    s_mov_b32 s{sWw+2}, {896*1024}
    s_cmov_b32 s{sWw+2}, {512*1024}
    s_cselect_b32 s{sT}, 0, 32
    s_and_b32 s{sWw+1}, s{sWw+1}, 0xffff
    s_mov_b32 s{sWw+3}, 0x20000
    s_sub_u32 s{sT}, s{sKg}, s{sT}
    s_lshl_b32 s{sT}, s{sT}, 14
    s_lshl_b32 s{sL}, s{sWave}, 14
    """)
    for r in range(16):
        if r % 4 == 0:
            a(f"s_add_u32 m0, s{sL}, {r*1024}")
            a(f"s_add_u32 s{sT2}, s{sT}, {r*1024}")
        a(f"buffer_load_dwordx4 v{vL16}, s[{sWw}:{sWw+3}], s{sT2} offen offset:{(r%4)*1024} lds")
    a(f"""
    v_lshrrev_b32 v{vT1}, 5, v{vLane}
    v_bfe_u32 v{vT2}, v{vLane}, 2, 2
    v_lshl_add_u32 v{vT1}, v{vT1}, 2, v{vT2}
    v_lshlrev_b32 v{vT1}, 10, v{vT1}
    v_bfe_u32 v{vT2}, v{vLane}, 4, 1
    v_lshl_add_u32 v{vT1}, v{vT2}, 5, v{vT1}
    v_and_b32 v{vT2}, 1, v{vLane}
    v_lshl_add_u32 v{vT1}, v{vT2}, 4, v{vT1}
    v_bfe_u32 v{vT2}, v{vLane}, 1, 1
    v_lshl_add_u32 v{vT1}, v{vT2}, 3, v{vT1}
    v_add_u32 v{vTa}, s{sL}, v{vT1}
    s_lshl_b32 s{sT}, s{sKg}, 10
    s_add_u32 s{sT}, s{sT}, {WF}
    s_waitcnt vmcnt(0)
    """)
    vD = 32
    for nt in range(16):
        a(f"ds_read_b64_tr_b16 v[{vD+4*nt}:{vD+4*nt+1}], v{vTa} offset:{64*nt}")
        a(f"ds_read_b64_tr_b16 v[{vD+4*nt+2}:{vD+4*nt+3}], v{vTa} offset:{64*nt+8192}")
    a("s_waitcnt lgkmcnt(0)")
    for nt in range(16):
        a(f"buffer_store_dwordx4 v[{vD+4*nt}:{vD+4*nt+3}], v{vL16}, s[{sWS}:{sWS+3}], s{sT} offen")
        a(f"s_add_u32 s{sT}, s{sT}, 90112")
    a.label('L_k1_htouch')
    a(f"""
    s_lshl_b32 s{sT}, s2, 3
    s_add_u32 s{sT}, s{sT}, s{sWave}
    s_lshl_b32 s{sT}, s{sT}, 12
    v_lshlrev_b32 v{vT1}, 6, v{vLane}
    buffer_load_dword v{vTouch}, v{vT1}, s[{sSp}:{sSp+3}], s{sT} offen
    s_waitcnt vmcnt(0)
    """)
    a.label(L_end)
    a("s_endpgm")
    a.kernel_end(name, 256, 102)
    return ["; @launch kernel=k1_kernel grid=(256,1,1) block=(512,1,1) lds=163840"]
```

```python
from asmlib import *
from gen_k1 import *

MSHIFT = 80.0


def k2fin(a, k):
    if getattr(a, 'instr', False):
        a("s_waitcnt vmcnt(0)")
        stamp(a, k)
        stamp_flush(a, 1, k + 1, 4, 24, 4)
    a("s_endpgm")


def mfma(a, D, A, B, C):
    Cs = "0" if C is None else f"v[{C}:{C+15}]"
    a(f"v_mfma_f32_32x32x16_bf16 v[{D}:{D+15}], v[{A}:{A+3}], v[{B}:{B+3}], {Cs}")


def ln_scalars(a, vS, vQ, vNM, vRI, vT, sMask, n):
    a(f"""
    v_mul_f32 v{vS}, {f2u(1.0/n):#x}, v{vS}
    v_mul_f32 v{vQ}, {f2u(1.0/n):#x}, v{vQ}
    v_fma_f32 v{vQ}, -v{vS}, v{vS}, v{vQ}
    v_max_f32 v{vQ}, 0, v{vQ}
    v_cvt_pk_bf16_f32 v{vT}, v{vS}, v{vQ}
    v_lshlrev_b32 v{vNM}, 16, v{vT}
    v_xor_b32 v{vNM}, 0x80000000, v{vNM}
    v_and_b32 v{vQ}, s{sMask}, v{vT}
    v_add_f32 v{vQ}, {f2u(1e-5):#x}, v{vQ}
    v_cvt_pk_bf16_f32 v{vQ}, v{vQ}, v{vQ}
    v_and_b32 v{vQ}, s{sMask}, v{vQ}
    v_sqrt_f32 v{vQ}, v{vQ}
    s_nop 0
    v_cvt_pk_bf16_f32 v{vQ}, v{vQ}, v{vQ}
    v_and_b32 v{vQ}, s{sMask}, v{vQ}
    v_rcp_f32 v{vRI}, v{vQ}
    s_nop 0
    v_fma_f32 v{vS}, -v{vQ}, v{vRI}, 1.0
    v_fma_f32 v{vRI}, v{vS}, v{vRI}, v{vRI}
    """)


def ln_apply4(a, x0, tb, vNM, vRI, sMask):
    xs = [x0 + d for d in range(4)]
    for d in range(4):
        a(f"v_lshlrev_b32 v{tb+2*d}, 16, v{xs[d]}")
        a(f"v_and_b32 v{tb+2*d+1}, s{sMask}, v{xs[d]}")
    for d in range(4):
        a(f"v_pk_add_f32 v[{tb+2*d}:{tb+2*d+1}], v[{tb+2*d}:{tb+2*d+1}], v[{vNM}:{vNM+1}] op_sel_hi:[1,0]")
    for d in range(4):
        a(f"v_cvt_pk_bf16_f32 v{xs[d]}, v{tb+2*d}, v{tb+2*d+1}")
    for d in range(4):
        a(f"v_lshlrev_b32 v{tb+2*d}, 16, v{xs[d]}")
        a(f"v_and_b32 v{tb+2*d+1}, s{sMask}, v{xs[d]}")
    for d in range(4):
        a(f"v_pk_mul_f32 v[{tb+2*d}:{tb+2*d+1}], v[{tb+2*d}:{tb+2*d+1}], v[{vRI}:{vRI+1}] op_sel_hi:[1,0]")
    for d in range(4):
        a(f"v_cvt_pk_bf16_f32 v{xs[d]}, v{tb+2*d}, v{tb+2*d+1}")


def role_attn(a, opts):
    sWS = 8
    sWave, sHead, sQb, sT, sT2, sKoff, sLds, sC, sSlot, sSlotN, sOut = 24, 25, 26, 27, 28, 29, 30, 31, 32, 33, 34
    sVm = 36
    sVoff = 35
    sCls = 38
    sBad = 40
    vLane, vT1, vT2, vL16, vVl = 1, 2, 3, 4, 5
    vKa, vVa, vKn = 6, 7, 8
    vVn = 9
    vQ = 12
    vK = 20
    vV = 28
    vP = 44
    vS = 64
    vNC = 96
    vO = 128
    vTmp = 160

    a.c("==== attention role")
    a(f"""
    s_and_b32 s{sT}, s2, 7
    s_lshr_b32 s{sT2}, s2, 3
    s_lshl_b32 s{sHead}, s{sT}, 2
    s_lshr_b32 s{sT}, s{sT2}, 3
    s_add_u32 s{sHead}, s{sHead}, s{sT}
    s_and_b32 s{sQb}, s{sT2}, 7
    v_lshlrev_b32 v{vL16}, 4, v{vLane}
    s_lshl_b32 s{sKoff}, s{sHead}, 16
    s_lshl_b32 s{sLds}, s{sWave}, 11
    s_add_u32 s{sKoff}, s{sKoff}, s{sLds}
    s_add_u32 s{sKoff}, s{sKoff}, {KF}
    """)

    def dma_chunk(slot_expr_imm=None, sslot=None):
        if sslot is None:
            a(f"s_add_u32 m0, s{sLds}, {slot_expr_imm}")
        else:
            a(f"s_add_u32 m0, s{sLds}, s{sslot}")
        a(f"""
        s_add_u32 s{sT}, s{sKoff}, {VF-KF}
        buffer_load_dwordx4 v{vL16}, s[{sWS}:{sWS+3}], s{sKoff} offen lds
        buffer_load_dwordx4 v{vL16}, s[{sWS}:{sWS+3}], s{sKoff} offen offset:1024 lds
        s_add_u32 m0, m0, 8192
        s_add_u32 s{sKoff}, s{sKoff}, 8192
        buffer_load_dwordx4 v{vL16}, s[{sWS}:{sWS+3}], s{sT} offen lds
        buffer_load_dwordx4 v{vL16}, s[{sWS}:{sWS+3}], s{sT} offen offset:1024 lds
        """)

    a.c("Q loads: QF + head*65536 + (8*qb + 2*w)*1024")
    a(f"""
    s_lshl_b32 s{sT}, s{sQb}, 3
    s_lshl_b32 s{sT2}, s{sWave}, 1
    s_add_u32 s{sT}, s{sT}, s{sT2}
    s_mul_i32 s{sOut}, s{sT}, 90112
    s_lshl_b32 s{sT}, s{sT}, 10
    s_lshl_b32 s{sT2}, s{sHead}, 16
    s_add_u32 s{sT}, s{sT}, s{sT2}
    buffer_load_dwordx4 v[{vQ}:{vQ+3}], v{vL16}, s[{sWS}:{sWS+3}], s{sT} offen
    buffer_load_dwordx4 v[{vQ+4}:{vQ+7}], v{vL16}, s[{sWS}:{sWS+3}], s{sT} offen offset:1024
    s_lshl_b32 s{sT2}, s{sHead}, 10
    s_add_u32 s{sOut}, s{sOut}, s{sT2}
    s_add_u32 s{sOut}, s{sOut}, {AF}
    """)
    for c in range(3):
        dma_chunk(c * 16384)
    a.c("V lane offset: hf*256 + (l%16)*16 ; mask lanes (l%32)<16")
    a(f"""
    v_lshrrev_b32 v{vT1}, 5, v{vLane}
    v_and_b32 v{vT2}, 15, v{vLane}
    v_lshlrev_b32 v{vT2}, 4, v{vT2}
    v_lshl_add_u32 v{vVl}, v{vT1}, 8, v{vT2}
    s_mov_b32 s{sVm}, 0x0000ffff
    s_mov_b32 s{sVm+1}, 0x0000ffff
    v_mov_b32 v{vKa}, v{vL16}
    v_add_u32 v{vVa}, 8192, v{vVl}
    s_mov_b32 s{sT}, 0x3f803f80
    """)
    if 'vz' in a.flags:
        a(f"""
        v_and_b32 v{vT1}, 27, v{vLane}
        v_cmp_eq_u32 vcc, 16, v{vT1}
        v_mov_b32 v{vT2}, s{sT}
        v_cndmask_b32 v{vT2}, 0, v{vT2}, vcc
        """)
        for i in range(16):
            a(f"v_mov_b32 v{vV+i}, v{vT2}")
    else:
      for i in range(16):
        a(f"v_mov_b32 v{vV+i}, s{sT}")
    for i in range(16):
        a(f"v_mov_b32 v{vP+i}, 0")
    for i in range(32):
        a(f"v_mov_b32 v{vO+i}, 0")
    a("s_waitcnt vmcnt(8)\ns_barrier")
    stamp(a, 1)
    a.c("sample max over first 64 keys")
    a(f"""
    ds_read_b128 v[{vK}:{vK+3}], v{vKa}
    ds_read_b128 v[{vK+4}:{vK+7}], v{vKa} offset:1024
    s_mov_b64 exec, s[{sVm}:{sVm+1}]
    ds_read_b128 v[{vV}:{vV+3}], v{vVa}
    ds_read_b128 v[{vV+4}:{vV+7}], v{vVa} offset:512
    s_mov_b64 exec, -1
    s_waitcnt lgkmcnt(2)
    """)
    for qa in range(2):
        for t in range(2):
            mfma(a, vTmp + 32 * qa + 16 * t, vK + 4 * t, vQ + 4 * qa, None)
    a.nop(16)
    for qa in range(2):
        b = vTmp + 32 * qa
        n = 32
        cur = list(range(b, b + 32))
        while len(cur) > 1:
            nxt = []
            i = 0
            while i < len(cur):
                if i + 2 < len(cur):
                    a(f"v_max3_f32 v{cur[i]}, v{cur[i]}, v{cur[i+1]}, v{cur[i+2]}")
                    nxt.append(cur[i]); i += 3
                elif i + 1 < len(cur):
                    a(f"v_max_f32 v{cur[i]}, v{cur[i]}, v{cur[i+1]}")
                    nxt.append(cur[i]); i += 2
                else:
                    nxt.append(cur[i]); i += 1
            cur = nxt
        a(f"""
        v_mov_b32 v{b+1}, v{b}
        s_nop 1
        v_permlane32_swap_b32 v{b}, v{b+1}
        s_nop 1
        v_max_f32 v{b}, v{b}, v{b+1}
        v_sub_f32 v{b}, {f2u(-MSHIFT):#x}, v{b}
        """)
        for i in range(16):
            a(f"v_mov_b32 v{vNC+16*qa+i}, v{b}")
    a(f"""
    s_mov_b32 s{sC}, 0
    s_mov_b32 s{sSlot}, 0
    s_nop 1
    """)
    mfma(a, vS, vK, vQ, vNC)
    a.nop(12)
    if opts.get('prio_attn'):
        a(f"s_setprio {opts['prio_attn']}")
    L_loop = 'L_att_loop'
    stamp(a, 2)
    a(".p2align 6")
    a.label(L_loop)
    a.c("next chunk addresses")
    a(f"""
    s_add_u32 s{sSlotN}, s{sSlot}, 16384
    s_and_b32 s{sSlotN}, s{sSlotN}, 0xffff
    v_add_u32 v{vKn}, s{sSlotN}, v{vL16}
    s_add_u32 s{sT}, s{sSlotN}, 8192
    v_add_u32 v{vVn}, s{sT}, v{vVl}
    """)
    for t in range(8):
        for qa in range(2):
            u = 2 * t + qa
            S = vS + 16 * (u % 2)
            Sn = vS + 16 * ((u + 1) % 2)
            P = vP + 8 * (u % 2)
            Pp = vP + 8 * ((u + 1) % 2)
            Kc = vK + 4 * (t % 2)
            Kn = vK + 4 * ((t + 1) % 2)
            Vc = vV + 8 * (t % 2)
            Vn = vV + 8 * ((t + 1) % 2)
            if qa == 0:
                if t == 6 and 'sdma' in a.flags:
                    L1 = a.newlabel('att_w')
                    a(f"""
                    s_waitcnt vmcnt(4)
                    s_cmp_lt_u32 s{sC}, 6
                    s_cbranch_scc1 {L1}
                    s_waitcnt vmcnt(0)
                    """)
                    a.label(L1)
                    a(f"""
                    s_barrier
                    s_cmp_lt_u32 s{sC}, 5
                    s_cselect_b64 vcc, -1, 0
                    s_add_u32 s{sT2}, s{sSlot}, 49152
                    s_and_b32 s{sT2}, s{sT2}, 0xffff
                    s_add_u32 s{sT2}, s{sT2}, s{sLds}
                    s_add_u32 s{sVoff}, s{sKoff}, {VF-KF}
                    """)
                elif t == 6:
                    L1 = a.newlabel('att_w')
                    L2 = a.newlabel('att_d')
                    a(f"""
                    s_waitcnt vmcnt(4)
                    s_cmp_lt_u32 s{sC}, 6
                    s_cbranch_scc1 {L1}
                    s_waitcnt vmcnt(0)
                    """)
                    a.label(L1)
                    a(f"""
                    s_barrier
                    s_cmp_ge_u32 s{sC}, 5
                    s_cbranch_scc1 {L2}
                    s_add_u32 s{sT2}, s{sSlot}, 49152
                    s_and_b32 s{sT2}, s{sT2}, 0xffff
                    """)
                    dma_chunk(sslot=sT2)
                    a.label(L2)
                if t < 7:
                    a(f"ds_read_b128 v[{Kn}:{Kn+3}], v{vKa} offset:{1024*(t+1)}")
                else:
                    a(f"ds_read_b128 v[{Kn}:{Kn+3}], v{vKn}")
                mfma(a, Sn, Kc, vQ + 4, vNC + 16)
            else:
                a("s_waitcnt lgkmcnt(0)")
                mfma(a, Sn, Kn, vQ, vNC)
            for i in range(4):
                a(f"v_exp_f32 v{S+i}, v{S+i}")
            if qa == 0:
                mfma(a, vO + 16, Vn + 4, Pp + 4, vO + 16)
            else:
                mfma(a, vO, Vc + 4, Pp + 4, vO)
                a(f"s_mov_b64 exec, s[{sVm}:{sVm+1}]")
                if t < 7:
                    a(f"ds_read_b128 v[{Vn}:{Vn+3}], v{vVa} offset:{1024*(t+1)}")
                    a(f"ds_read_b128 v[{Vn+4}:{Vn+7}], v{vVa} offset:{1024*(t+1)+512}")
                else:
                    a(f"ds_read_b128 v[{Vn}:{Vn+3}], v{vVn}")
                    a(f"ds_read_b128 v[{Vn+4}:{Vn+7}], v{vVn} offset:512")
                a("s_mov_b64 exec, -1")
            for i in range(4, 8):
                a(f"v_exp_f32 v{S+i}, v{S+i}")
                if i == 5 and t >= 6 and 'sdma' in a.flags:
                    j = 2 * (t - 6) + qa
                    L2 = a.newlabel('att_d')
                    a(f"s_cbranch_vccz {L2}")
                    a(f"s_add_u32 m0, s{sT2}, {8192*(j//2)}")
                    a("s_nop 0")
                    a(f"buffer_load_dwordx4 v{vL16}, s[{sWS}:{sWS+3}], s{sKoff if j < 2 else sVoff} offen offset:{1024*(j%2)} lds")
                    if j == 3:
                        a(f"s_add_u32 s{sKoff}, s{sKoff}, 8192")
                    a.label(L2)
            for d in range(4):
                a(f"v_cvt_pk_bf16_f32 v{P+d}, v{S+2*d}, v{S+2*d+1}")
            for i in range(8, 10):
                a(f"v_exp_f32 v{S+i}, v{S+i}")
            if qa == 0:
                a("s_waitcnt lgkmcnt(1)")
            mfma(a, vO + 16 * qa, Vc, P, vO + 16 * qa)
            for i in range(10, 16):
                a(f"v_exp_f32 v{S+i}, v{S+i}")
            for d in range(4, 8):
                a(f"v_cvt_pk_bf16_f32 v{P+d}, v{S+2*d}, v{S+2*d+1}")
    a(f"""
    v_mov_b32 v{vKa}, v{vKn}
    v_mov_b32 v{vVa}, v{vVn}
    s_mov_b32 s{sSlot}, s{sSlotN}
    s_add_u32 s{sC}, s{sC}, 1
    s_cmp_lt_u32 s{sC}, 8
    s_cbranch_scc1 {L_loop}
    """)
    mfma(a, vO + 16, vV + 8 + 4, vP + 8 + 4, vO + 16)
    a("s_setprio 0")
    a("s_waitcnt lgkmcnt(0)")
    a.nop(20)
    stamp(a, 3)
    a.c("validity check")
    L_fb = 'L_att_fallback'
    L_fin = 'L_att_fin'
    a(f"""
    s_mov_b32 s{sCls}, 0x2ff
    s_mov_b64 s[{sBad}:{sBad+1}], 0
    """)
    for qa in range(2):
        a(f"v_cmp_class_f32 vcc, v{vO+16*qa+8}, s{sCls}".replace("vcc, v", "s[42:43], v"))
        a(f"s_or_b64 s[{sBad}:{sBad+1}], s[{sBad}:{sBad+1}], s[42:43]")
    a(f"s_mov_b32 s{sCls}, 0x207")
    for qa in range(2):
        for i in range(8):
            a(f"v_cmp_class_f32 s[42:43], v{vO+16*qa+i}, s{sCls}")
            a(f"s_or_b64 s[{sBad}:{sBad+1}], s[{sBad}:{sBad+1}], s[42:43]")
    if opts.get('force_fallback'):
        a(f"s_branch {L_fb}")
    a(f"""
    s_cmp_lg_u64 s[{sBad}:{sBad+1}], 0
    s_cbranch_scc1 {L_fb}
    """)
    a.label(L_fin)
    for qa in range(2):
        o = vO + 16 * qa
        a(f"v_rcp_f32 v{o+9}, v{o+8}")
        a("s_nop 0")
        a(f"v_fma_f32 v{o+10}, -v{o+8}, v{o+9}, 1.0")
        a(f"v_fma_f32 v{o+9}, v{o+10}, v{o+9}, v{o+9}")
        for i in range(8):
            a(f"v_mul_f32 v{o+i}, v{o+i}, v{o+9}")
        for d in range(4):
            a(f"v_cvt_pk_bf16_f32 v{vP+4*qa+d}, v{o+2*d}, v{o+2*d+1}")
        a(f"s_add_u32 s{sT}, s{sOut}, {90112*qa}")
        a(f"buffer_store_dwordx4 v[{vP+4*qa}:{vP+4*qa+3}], v{vL16}, s[{sWS}:{sWS+3}], s{sT} offen")
    k2fin(a, 4)

    a.label(L_fb)
    vM = vTmp
    vAl = vTmp + 2
    vMx = vTmp + 4
    a(f"""
    s_lshl_b32 s{sKoff}, s{sHead}, 16
    s_add_u32 s{sKoff}, s{sKoff}, {KF}
    s_mov_b32 s{sC}, 0
    v_mov_b32 v{vM}, {f2u(-3.0e38):#x}
    v_mov_b32 v{vM+1}, {f2u(-3.0e38):#x}
    """)
    for i in range(32):
        a(f"v_mov_b32 v{vO+i}, 0")
    L_fl = 'L_att_fbloop'
    a.label(L_fl)
    a(f"""
    s_add_u32 s{sT}, s{sKoff}, {VF-KF}
    buffer_load_dwordx4 v[{vK}:{vK+3}], v{vL16}, s[{sWS}:{sWS+3}], s{sKoff} offen
    s_mov_b64 exec, s[{sVm}:{sVm+1}]
    buffer_load_dwordx4 v[{vV}:{vV+3}], v{vVl}, s[{sWS}:{sWS+3}], s{sT} offen
    buffer_load_dwordx4 v[{vV+4}:{vV+7}], v{vVl}, s[{sWS}:{sWS+3}], s{sT} offen offset:512
    s_mov_b64 exec, -1
    s_waitcnt vmcnt(0)
    """)
    for qa in range(2):
        S = vS + 16 * qa
        o = vO + 16 * qa
        mfma(a, S, vK, vQ + 4 * qa, None)
        a.nop(20)
        a(f"v_max3_f32 v{vMx}, v{S}, v{S+1}, v{S+2}")
        for i in range(3, 15, 2):
            a(f"v_max3_f32 v{vMx}, v{vMx}, v{S+i}, v{S+i+1}")
        a(f"""
        v_max3_f32 v{vMx}, v{vMx}, v{S+15}, v{vM+qa}
        v_mov_b32 v{vMx+1}, v{vMx}
        s_nop 1
        v_permlane32_swap_b32 v{vMx}, v{vMx+1}
        s_nop 1
        v_max_f32 v{vMx}, v{vMx}, v{vMx+1}
        v_sub_f32 v{vAl}, v{vM+qa}, v{vMx}
        v_exp_f32 v{vAl}, v{vAl}
        v_mov_b32 v{vM+qa}, v{vMx}
        """)
        for i in range(16):
            a(f"v_mul_f32 v{o+i}, v{o+i}, v{vAl}")
        for i in range(16):
            a(f"v_sub_f32 v{S+i}, v{S+i}, v{vMx}")
        for i in range(16):
            a(f"v_exp_f32 v{S+i}, v{S+i}")
        a("s_nop 0")
        for d in range(8):
            a(f"v_cvt_pk_bf16_f32 v{vP+d}, v{S+2*d}, v{S+2*d+1}")
        a("s_nop 1")
        mfma(a, o, vV, vP, o)
        mfma(a, o, vV + 4, vP + 4, o)
        a.nop(20)
    a(f"""
    s_add_u32 s{sKoff}, s{sKoff}, 1024
    s_add_u32 s{sC}, s{sC}, 1
    s_cmp_lt_u32 s{sC}, 64
    s_cbranch_scc1 {L_fl}
    s_branch {L_fin}
    """)


def role_spatial(a, opts):
    sWS, sWsp, sBsp, sDbg = 8, 12, 16, 20
    sWave, sTb, sFb, sT, sT2, sWt, sWf, sMask = 24, 25, 26, 27, 28, 29, 30, 31
    sWoff, sZoff, sLW, sLZ, sIt, sTT = 32, 33, 34, 35, 36, 37
    vLane, vT1, vT2, vT3, vL16 = 1, 2, 3, 4, 5
    vWo = 6
    vZo = 8
    vWa = 10
    vZa = 14
    vNM, vRI = 16, 18
    vSt = 20
    vX = 36
    vTt = 52
    vF = 64
    vAcc = 96
    vZ1 = 128
    vBs = 144
    vPk = 148

    a.c("==== spatial role")
    a(f"""
    s_and_b32 s{sT}, s3, 7
    s_lshr_b32 s{sT2}, s3, 3
    s_lshr_b32 s{sTb}, s{sT}, 1
    s_lshl_b32 s{sTb}, s{sTb}, 2
    s_and_b32 s{sFb}, s{sT2}, 3
    s_add_u32 s{sTb}, s{sTb}, s{sFb}
    s_and_b32 s{sFb}, s{sT}, 1
    s_mul_i32 s{sFb}, s{sFb}, 7
    s_lshr_b32 s{sT2}, s{sT2}, 2
    s_add_u32 s{sFb}, s{sFb}, s{sT2}
    s_and_b32 s{sWt}, s{sWave}, 1
    s_lshr_b32 s{sWf}, s{sWave}, 1
    s_mov_b32 s{sMask}, 0xffff0000
    v_lshlrev_b32 v{vL16}, 4, v{vLane}
    """)
    nopro = 'nopro' in a.flags
    if not nopro:
        a.c("normalise: tile tt = 4*tb + w")
        a(f"""
        s_lshl_b32 s{sTT}, s{sTb}, 2
        s_add_u32 s{sTT}, s{sTT}, s{sWave}
        v_and_b32 v{vT1}, 31, v{vLane}
        v_lshlrev_b32 v{vT1}, 3, v{vT1}
        s_lshl_b32 s{sT}, s{sTT}, 8
        s_add_u32 s{sT}, s{sT}, {ST}
        """)
        for u in range(7):
            a(f"buffer_load_dwordx2 v[{vSt+2*u}:{vSt+2*u+1}], v{vT1}, s[{sWS}:{sWS+3}], s{sT} offen")
            if u < 6:
                a(f"s_add_u32 s{sT}, s{sT}, 16384")
        a(f"""
        s_mul_i32 s{sT2}, s{sTT}, 57344
        s_lshl_b32 s{sT}, s{sFb}, 12
        s_add_u32 s{sT2}, s{sT2}, s{sT}
        s_add_u32 s{sT}, s{sT2}, {Z2F}
        """)
        for g in range(4):
            a(f"buffer_load_dwordx4 v[{vX+4*g}:{vX+4*g+3}], v{vL16}, s[{sWS}:{sWS+3}], s{sT} offen offset:{1024*g}")
    a.c("DMA lane offsets")
    a(f"""
    v_lshrrev_b32 v{vT1}, 3, v{vLane}
    v_and_b32 v{vT2}, 7, v{vLane}
    v_lshrrev_b32 v{vT3}, 4, v{vLane}
    v_xor_b32 v{vT3}, v{vT2}, v{vT3}
    v_lshlrev_b32 v{vWo}, 4, v{vT3}
    v_lshl_add_u32 v{vWo}, v{vT1}, 12, v{vWo}
    v_xor_b32 v{vWo+1}, 64, v{vWo}
    v_bfe_u32 v{vT3}, v{vLane}, 4, 1
    v_lshlrev_b32 v{vT3}, 2, v{vT3}
    v_xor_b32 v{vT3}, v{vT2}, v{vT3}
    v_lshlrev_b32 v{vT3}, 9, v{vT3}
    v_lshl_add_u32 v{vZo}, v{vT1}, 4, v{vT3}
    """)
    zfl = 'zfl' in a.flags
    vZo2, vZa2 = 9, 15
    if zfl:
        a.c("Z DMA lane offset j: L*16 ^ ((2j + L/32) << 6)")
        a(f"""
        v_lshrrev_b32 v{vT1}, 5, v{vLane}
        v_lshlrev_b32 v{vT1}, 6, v{vT1}
        v_xor_b32 v{vZo}, v{vT1}, v{vL16}
        v_xor_b32 v{vZo2}, 0x80, v{vZo}
        """)
    a(f"""
    s_lshl_b32 s{sWoff}, s{sTb}, 7
    s_lshl_b32 s{sT}, s{sWave}, 5
    s_add_u32 s{sWoff}, s{sWoff}, s{sT}
    s_lshl_b32 s{sWoff}, s{sWoff}, 12
    s_mul_i32 s{sZoff}, s{sWf}, 57344
    s_lshl_b32 s{sT}, s{sFb}, 12
    s_add_u32 s{sZoff}, s{sZoff}, s{sT}
    s_lshl_b32 s{sT}, s{sWt}, {11 if zfl else 8}
    s_add_u32 s{sZoff}, s{sZoff}, s{sT}
    s_add_u32 s{sZoff}, s{sZoff}, {Z2N}
    s_lshl_b32 s{sLW}, s{sWave}, 12
    s_lshl_b32 s{sLZ}, s{sWave}, 11
    s_add_u32 s{sLZ}, s{sLZ}, 16384
    """)

    def dma_w(st):
        for q in range(4):
            a(f"s_add_u32 m0, s{sLW}, {st*24576 + q*1024}")
            if q == 0:
                a("s_nop 0")
                a(f"buffer_load_dwordx4 v{vWo}, s[{sWsp}:{sWsp+3}], s{sWoff} offen lds")
            else:
                a(f"s_add_u32 s{sT}, s{sWoff}, {q*8*4096}")
                a(f"buffer_load_dwordx4 v{vWo+q%2}, s[{sWsp}:{sWsp+3}], s{sT} offen lds")
        a(f"s_add_u32 s{sWoff}, s{sWoff}, {0 if 'samew' in a.flags else 128}")

    zsc = '' if nopro else 'sc1'

    def dma_z(st):
        a(f"""
        s_add_u32 m0, s{sLZ}, {st*24576}
        s_add_u32 s{sT}, s{sZoff}, {1024 if zfl else 128}
        buffer_load_dwordx4 v{vZo}, s[{sWS}:{sWS+3}], s{sZoff} offen {zsc} lds
        s_add_u32 m0, s{sLZ}, {st*24576+1024}
        s_add_u32 s{sZoff}, s{sZoff}, {0 if 'samez' in a.flags else 2*57344}
        buffer_load_dwordx4 v{vZo2 if zfl else vZo}, s[{sWS}:{sWS+3}], s{sT} offen {zsc} lds
        """)

    if nopro:
        dma_w(0)
        dma_z(0)
        dma_w(1)
        dma_z(1)
    else:
        dma_w(0)
        dma_w(1)
    a.c("frag read addresses")
    a(f"""
    v_and_b32 v{vT1}, 31, v{vLane}
    v_lshrrev_b32 v{vT2}, 5, v{vLane}
    v_bfe_u32 v{vT3}, v{vLane}, 1, 3
    v_xor_b32 v{vT3}, v{vT3}, v{vT2}
    s_lshl_b32 s{sT}, s{sWt}, 13
    v_lshl_add_u32 v{vT1}, v{vT1}, 7, s{sT}
    """)
    for ks in range(4):
        a(f"v_xor_b32 v{vWa+ks}, {2*ks}, v{vT3}")
        a(f"v_lshl_add_u32 v{vWa+ks}, v{vWa+ks}, 4, v{vT1}")
    a(f"""
    v_bfe_u32 v{vT1}, v{vLane}, 2, 2
    v_lshl_add_u32 v{vT2}, v{vT2}, 3, v{vT1}
    v_lshlrev_b32 v{vT2}, 7, v{vT2}
    v_bfe_u32 v{vT3}, v{vLane}, 4, 1
    v_lshlrev_b32 v{vT3}, 1, v{vT3}
    v_and_b32 v{vZa}, 1, v{vLane}
    v_add_u32 v{vT3}, v{vT3}, v{vZa}
    s_lshl_b32 s{sT}, s{sWf}, 2
    v_add_u32 v{vT3}, s{sT}, v{vT3}
    v_bfe_u32 v{vZa}, v{vLane}, 3, 1
    v_lshlrev_b32 v{vZa}, 2, v{vZa}
    v_xor_b32 v{vT3}, v{vT3}, v{vZa}
    v_lshl_add_u32 v{vT2}, v{vT3}, 4, v{vT2}
    v_bfe_u32 v{vT3}, v{vLane}, 1, 1
    v_lshl_add_u32 v{vT2}, v{vT3}, 3, v{vT2}
    v_add_u32 v{vZa}, 16384, v{vT2}
    """)
    if zfl:
        a.c("Z tr addr: 16384 + (2wf+c16)*1024 + hfz*512 + (2(hf^c16) + (hr^hfz))*64 + r*16 + half*8")
        a(f"""
        v_bfe_u32 v{vT1}, v{vLane}, 4, 1
        v_lshrrev_b32 v{vT2}, 5, v{vLane}
        v_xor_b32 v{vT2}, v{vT2}, v{vT1}
        v_lshlrev_b32 v{vT2}, 7, v{vT2}
        v_lshl_add_u32 v{vT2}, v{vT1}, 10, v{vT2}
        v_and_b32 v{vT1}, 1, v{vLane}
        v_lshl_add_u32 v{vT2}, v{vT1}, 9, v{vT2}
        v_lshl_add_u32 v{vT2}, v{vT1}, 6, v{vT2}
        v_bfe_u32 v{vT1}, v{vLane}, 2, 2
        v_lshl_add_u32 v{vT2}, v{vT1}, 4, v{vT2}
        v_bfe_u32 v{vT1}, v{vLane}, 1, 1
        v_lshl_add_u32 v{vT2}, v{vT1}, 3, v{vT2}
        s_lshl_b32 s{sT}, s{sWf}, 11
        s_add_u32 s{sT}, s{sT}, 16384
        v_add_u32 v{vZa}, s{sT}, v{vT2}
        v_xor_b32 v{vZa2}, 64, v{vZa}
        """)
    if not nopro:
        a("s_waitcnt vmcnt(12)")
        stamp(a, 1)
        for u in range(1, 7):
            a(f"v_add_f32 v{vSt}, v{vSt}, v{vSt+2*u}")
            a(f"v_add_f32 v{vSt+1}, v{vSt+1}, v{vSt+2*u+1}")
        ln_scalars(a, vSt, vSt + 1, vNM, vRI, vSt + 2, sMask, 896)
        a("s_waitcnt vmcnt(8)")
        a(f"s_add_u32 s{sT2}, s{sT2}, {Z2N}")
        for g in range(4):
            ln_apply4(a, vX + 4 * g, vTt, vNM, vRI, sMask)
            a(f"buffer_store_dwordx4 v[{vX+4*g}:{vX+4*g+3}], v{vL16}, s[{sWS}:{sWS+3}], s{sT2} offen offset:{1024*g} sc0 sc1")
        L_np = 'L_sp_nopoll'
        L_poll = 'L_sp_poll'
        a("s_waitcnt vmcnt(0)")
        stamp(a, 2)
        a(f"""
        s_barrier
        s_cmp_lg_u32 s{sWave}, 0
        s_cbranch_scc1 {L_np}
        s_lshl_b32 s{sT}, s{sFb}, 2
        v_mov_b32 v{vT1}, 1
        s_mov_b64 exec, 1
        buffer_atomic_add v{vT1}, off, s[{sDbg}:{sDbg+3}], s{sT} sc1
        """)
        a.label(L_poll)
        a(f"""
        buffer_load_dword v{vT2}, off, s[{sDbg}:{sDbg+3}], s{sT} sc1
        s_waitcnt vmcnt(0)
        v_readfirstlane_b32 s{sT2}, v{vT2}
        s_nop 3
        s_cmp_ge_u32 s{sT2}, 16
        s_cbranch_scc1 {L_np}_x
        s_sleep 2
        s_branch {L_poll}
        """)
        a.label(L_np + '_x')
        a("s_mov_b64 exec, -1")
        a.label(L_np)
        a("s_barrier")
        stamp(a, 3)
    if not nopro:
        dma_z(0)
        dma_z(1)
    for i in range(32):
        a(f"v_mov_b32 v{vAcc+i}, 0")

    def reads(st, ks):
        f = vF + 12 * (ks % 2)
        base = st * 24576
        a(f"ds_read_b128 v[{f}:{f+3}], v{vWa+ks} offset:{base}")
        a(f"ds_read_b128 v[{f+4}:{f+7}], v{vWa+ks} offset:{base+4096}")
        if zfl:
            a(f"ds_read_b64_tr_b16 v[{f+8}:{f+9}], v{vZa} offset:{base + (ks>>1)*4096 + (ks&1)*256}")
            a(f"ds_read_b64_tr_b16 v[{f+10}:{f+11}], v{vZa2} offset:{base + (ks>>1)*4096 + (ks&1)*256}")
            return
        a(f"ds_read_b64_tr_b16 v[{f+8}:{f+9}], v{vZa} offset:{base + (16*ks)*128}")
        a(f"ds_read_b64_tr_b16 v[{f+10}:{f+11}], v{vZa} offset:{base + (16*ks+4)*128}")

    def body(st, wait, dma):
        a(f"s_waitcnt vmcnt({wait})\ns_barrier")
        reads(st, 0)
        if dma:
            dma_w((st + 2) % 3)
            dma_z((st + 2) % 3)
        for ks in range(4):
            if ks < 3:
                reads(st, ks + 1)
                a("s_waitcnt lgkmcnt(4)")
            else:
                a("s_waitcnt lgkmcnt(0)")
            f = vF + 12 * (ks % 2)
            mfma(a, vAcc, f + 8, f, vAcc)
            mfma(a, vAcc + 16, f + 8, f + 4, vAcc + 16)

    if 'sp2' in a.flags:
        sW2, sZ2 = 38, 39

        def dma_piece(st, j):
            if j < 4:
                a(f"s_add_u32 m0, s{sLW}, {st*24576 + j*1024}")
                a(f"s_add_u32 s{sT}, s{sWoff}, {j*8*4096}")
                a(f"buffer_load_dwordx4 v{vWo+j%2}, s[{sWsp}:{sWsp+3}], s{sT} offen lds")
                if j == 3:
                    a(f"s_add_u32 s{sWoff}, s{sWoff}, 128")
            else:
                a(f"s_add_u32 m0, s{sLZ}, {st*24576 + (j-4)*1024}")
                a(f"s_add_u32 s{sT}, s{sZoff}, {(j-4)*(1024 if zfl else 128)}")
                a(f"buffer_load_dwordx4 v{vZo2 if (zfl and j == 5) else vZo}, s[{sWS}:{sWS+3}], s{sT} offen lds")
                if j == 5:
                    a(f"s_add_u32 s{sZoff}, s{sZoff}, {2*57344}")

        def epi_loads():
            a(f"""
            s_lshl_b32 s{sTT}, s{sTb}, 2
            s_lshl_b32 s{sT}, s{sWt}, 1
            s_add_u32 s{sTT}, s{sTT}, s{sT}
            s_lshl_b32 s{sT2}, s{sFb}, 2
            s_lshl_b32 s{sT}, s{sWf}, 1
            s_add_u32 s{sT2}, s{sT2}, s{sT}
            s_lshl_b32 s{sT2}, s{sT2}, 10
            s_mul_i32 s{sWoff}, s{sTT}, 57344
            s_add_u32 s{sWoff}, s{sWoff}, s{sT2}
            s_add_u32 s{sWoff}, s{sWoff}, {Z1F}
            s_mul_i32 s{sZoff}, s{sTT}, 90112
            s_add_u32 s{sZoff}, s{sZoff}, s{sT2}
            s_add_u32 s{sZoff}, s{sZoff}, {AF + 32*1024}
            v_and_b32 v{vT1}, 31, v{vLane}
            v_lshlrev_b32 v{vT1}, 1, v{vT1}
            s_lshl_b32 s{sT}, s{sTT}, 6
            buffer_load_ushort v{vBs}, v{vT1}, s[{sBsp}:{sBsp+3}], s{sT} offen
            buffer_load_ushort v{vBs+1}, v{vT1}, s[{sBsp}:{sBsp+3}], s{sT} offen offset:64
            s_add_u32 s{sT}, s{sWoff}, 57344
            buffer_load_dwordx4 v[{vZ1}:{vZ1+3}], v{vL16}, s[{sWS}:{sWS+3}], s{sWoff} offen
            buffer_load_dwordx4 v[{vZ1+4}:{vZ1+7}], v{vL16}, s[{sWS}:{sWS+3}], s{sWoff} offen offset:1024
            buffer_load_dwordx4 v[{vZ1+8}:{vZ1+11}], v{vL16}, s[{sWS}:{sWS+3}], s{sT} offen
            buffer_load_dwordx4 v[{vZ1+12}:{vZ1+15}], v{vL16}, s[{sWS}:{sWS+3}], s{sT} offen offset:1024
            """)

        def body2(st, dma, last=False, epi=False):
            for ks in range(4):
                f = vF + 12 * (ks % 2)
                if ks < 3:
                    reads(st, ks + 1)
                    a("s_waitcnt lgkmcnt(4)")
                elif not last:
                    a("s_waitcnt vmcnt(6) lgkmcnt(0)\ns_barrier")
                    reads((st + 1) % 3, 0)
                else:
                    a("s_waitcnt lgkmcnt(0)")
                mfma(a, vAcc, f + 8, f, vAcc)
                if dma and ks < 3:
                    dma_piece((st + 2) % 3, 2 * ks)
                if epi and ks == 0:
                    epi_loads()
                mfma(a, vAcc + 16, f + 8, f + 4, vAcc + 16)
                if dma and ks < 3:
                    dma_piece((st + 2) % 3, 2 * ks + 1)

        a("s_waitcnt vmcnt(6)\ns_barrier")
        reads(0, 0)
        stamp(a, 4)
        a(f"s_mov_b32 s{sIt}, 10")
        L_l = 'L_sp_loop'
        a.label(L_l)
        body2(0, True)
        body2(1, True)
        body2(2, True)
        a(f"""
        s_sub_u32 s{sIt}, s{sIt}, 1
        s_cmp_lg_u32 s{sIt}, 0
        s_cbranch_scc1 {L_l}
        """)
        body2(0, False, epi=True)
        body2(1, False, last=True)
        stamp(a, 5)
    else:
        body(0, 6 if nopro else 2, True)
        body(1, 6, True)
        stamp(a, 4)
        a(f"s_mov_b32 s{sIt}, 9")
        L_l = 'L_sp_loop'
        a.label(L_l)
        body(2, 6, True)
        body(0, 6, True)
        body(1, 6, True)
        a(f"""
        s_sub_u32 s{sIt}, s{sIt}, 1
        s_cmp_lg_u32 s{sIt}, 0
        s_cbranch_scc1 {L_l}
        """)
        body(2, 6, True)
        body(0, 6, False)
        a.c("epilogue loads: z1, b")
        a(f"""
        s_lshl_b32 s{sTT}, s{sTb}, 2
        s_lshl_b32 s{sT}, s{sWt}, 1
        s_add_u32 s{sTT}, s{sTT}, s{sT}
        s_lshl_b32 s{sT2}, s{sFb}, 2
        s_lshl_b32 s{sT}, s{sWf}, 1
        s_add_u32 s{sT2}, s{sT2}, s{sT}
        s_lshl_b32 s{sT2}, s{sT2}, 10
        s_mul_i32 s{sWoff}, s{sTT}, 57344
        s_add_u32 s{sWoff}, s{sWoff}, s{sT2}
        s_add_u32 s{sWoff}, s{sWoff}, {Z1F}
        s_mul_i32 s{sZoff}, s{sTT}, 90112
        s_add_u32 s{sZoff}, s{sZoff}, s{sT2}
        s_add_u32 s{sZoff}, s{sZoff}, {AF + 32*1024}
        v_and_b32 v{vT1}, 31, v{vLane}
        v_lshlrev_b32 v{vT1}, 1, v{vT1}
        s_lshl_b32 s{sT}, s{sTT}, 6
        """)
        body(1, 0, False)
        stamp(a, 5)
    if 'sp2' not in a.flags:
        a(f"""
        buffer_load_ushort v{vBs}, v{vT1}, s[{sBsp}:{sBsp+3}], s{sT} offen
        buffer_load_ushort v{vBs+1}, v{vT1}, s[{sBsp}:{sBsp+3}], s{sT} offen offset:64
        s_add_u32 s{sT}, s{sWoff}, 57344
        buffer_load_dwordx4 v[{vZ1}:{vZ1+3}], v{vL16}, s[{sWS}:{sWS+3}], s{sWoff} offen
        buffer_load_dwordx4 v[{vZ1+4}:{vZ1+7}], v{vL16}, s[{sWS}:{sWS+3}], s{sWoff} offen offset:1024
        buffer_load_dwordx4 v[{vZ1+8}:{vZ1+11}], v{vL16}, s[{sWS}:{sWS+3}], s{sT} offen
        buffer_load_dwordx4 v[{vZ1+12}:{vZ1+15}], v{vL16}, s[{sWS}:{sWS+3}], s{sT} offen offset:1024
        """)
    a(f"""
    s_waitcnt vmcnt(0)
    v_lshlrev_b32 v{vBs}, 16, v{vBs}
    v_lshlrev_b32 v{vBs+1}, 16, v{vBs+1}
    """)
    a.nop(16)
    for i2 in range(2):
        for e in range(2):
            g = 2 * i2 + e
            acc = vAcc + 8 * g
            for d in range(4):
                z = vZ1 + 4 * g + d
                a(f"""
                v_lshlrev_b32 v{vTt+2*d}, 16, v{z}
                v_and_b32 v{vTt+2*d+1}, s{sMask}, v{z}
                v_add_f32 v{acc+2*d}, v{acc+2*d}, v{vBs+i2}
                v_add_f32 v{acc+2*d+1}, v{acc+2*d+1}, v{vBs+i2}
                v_mul_f32 v{acc+2*d}, v{acc+2*d}, v{vTt+2*d}
                v_mul_f32 v{acc+2*d+1}, v{acc+2*d+1}, v{vTt+2*d+1}
                v_cvt_pk_bf16_f32 v{vPk+4*g+d}, v{acc+2*d}, v{acc+2*d+1}
                """)
            a(f"s_add_u32 s{sT}, s{sZoff}, {90112*i2}")
            a(f"buffer_store_dwordx4 v[{vPk+4*g}:{vPk+4*g+3}], v{vL16}, s[{sWS}:{sWS+3}], s{sT} offen offset:{1024*e}")
    k2fin(a, 6)


def role_wt(a, opts):
    sWS = 8
    sWw = 12
    sWave, sKg, sT, sT2, sL = 24, 25, 26, 27, 28
    vLane, vT1, vT2, vT3, vL16, vTa = 1, 2, 3, 4, 5, 6
    vD = 16
    a.c("==== weight transpose role")
    a(f"""
    s_lshl_b32 s{sKg}, s3, 2
    s_add_u32 s{sKg}, s{sKg}, s{sWave}
    s_cmp_ge_u32 s{sKg}, 88
    s_cbranch_scc1 L_k2_end
    s_cmp_lt_u32 s{sKg}, 32
    s_cselect_b32 s{sWw}, s44, s46
    s_cselect_b32 s{sWw+1}, s45, s47
    s_mov_b32 s{sWw+2}, {896*1024}
    s_cmov_b32 s{sWw+2}, {512*1024}
    s_cselect_b32 s{sT}, 0, 32
    s_and_b32 s{sWw+1}, s{sWw+1}, 0xffff
    s_mov_b32 s{sWw+3}, 0x20000
    s_sub_u32 s{sT}, s{sKg}, s{sT}
    s_lshl_b32 s{sT}, s{sT}, 14
    s_lshl_b32 s{sL}, s{sWave}, 14
    v_lshlrev_b32 v{vL16}, 4, v{vLane}
    """)
    for r in range(16):
        if r % 4 == 0:
            a(f"s_add_u32 m0, s{sL}, {r*1024}")
            a(f"s_add_u32 s{sT2}, s{sT}, {r*1024}")
        a(f"buffer_load_dwordx4 v{vL16}, s[{sWw}:{sWw+3}], s{sT2} offen offset:{(r%4)*1024} lds")
    a(f"""
    v_lshrrev_b32 v{vT1}, 5, v{vLane}
    v_bfe_u32 v{vT2}, v{vLane}, 2, 2
    v_lshl_add_u32 v{vT1}, v{vT1}, 2, v{vT2}
    v_lshlrev_b32 v{vT1}, 10, v{vT1}
    v_bfe_u32 v{vT2}, v{vLane}, 4, 1
    v_lshl_add_u32 v{vT1}, v{vT2}, 5, v{vT1}
    v_and_b32 v{vT2}, 1, v{vLane}
    v_lshl_add_u32 v{vT1}, v{vT2}, 4, v{vT1}
    v_bfe_u32 v{vT2}, v{vLane}, 1, 1
    v_lshl_add_u32 v{vT1}, v{vT2}, 3, v{vT1}
    v_add_u32 v{vTa}, s{sL}, v{vT1}
    s_lshl_b32 s{sT}, s{sKg}, 10
    s_add_u32 s{sT}, s{sT}, {WF}
    s_waitcnt vmcnt(0)
    """)
    for nt in range(16):
        a(f"ds_read_b64_tr_b16 v[{vD+4*nt}:{vD+4*nt+1}], v{vTa} offset:{64*nt}")
        a(f"ds_read_b64_tr_b16 v[{vD+4*nt+2}:{vD+4*nt+3}], v{vTa} offset:{64*nt+8192}")
    a("s_waitcnt lgkmcnt(0)")
    for nt in range(16):
        a(f"buffer_store_dwordx4 v[{vD+4*nt}:{vD+4*nt+3}], v{vL16}, s[{sWS}:{sWS+3}], s{sT} offen")
        a(f"s_add_u32 s{sT}, s{sT}, 90112")
    k2fin(a, 1)


def gen_k2(a, which):
    opts = {}
    for w in which:
        if w.startswith('prio'):
            opts['prio_attn'] = int(w[4:])
        if w == 'fb':
            opts['force_fallback'] = True
    name = 'k2_kernel'
    a.kernel_begin(name)
    a(f"""
    s_cmp_ge_u32 s2, {480 if 'nopro' in a.flags else 512}
    s_cbranch_scc1 L_k2_end
    s_load_dwordx2 s[4:5], s[0:1], 80
    s_load_dwordx4 s[48:51], s[0:1], 40
    s_load_dwordx2 s[52:53], s[0:1], 72
    s_load_dwordx2 s[44:45], s[0:1], 16
    s_load_dwordx2 s[46:47], s[0:1], 56
    """)
    stamp(a, 0)
    a(f"""
    v_lshrrev_b32 v2, 6, v0
    v_and_b32 v1, 63, v0
    s_nop 0
    v_readfirstlane_b32 s24, v2
    s_waitcnt lgkmcnt(0)
    """)
    a.srd(8, 4, WS_SIZE)
    a.srd(12, 48, 2048 * 4096)
    a.srd(16, 50, 4096)
    a.srd(20, 52, 256)
    a(f"""
    s_cmp_lt_u32 s2, 256
    s_cbranch_scc1 {'L_k2_end' if 'noatt' in a.flags else 'L_k2_attn'}
    {'s_branch L_k2_end' if 'nosp' in a.flags else ''}
    s_cmp_lt_u32 s2, 480
    s_cbranch_scc1 L_k2_sp
    s_sub_u32 s3, s2, 480
    """)
    if 'nopro' not in a.flags:
        role_wt(a, opts)
    a.label('L_k2_sp')
    a("s_sub_u32 s3, s2, 256")
    role_spatial(a, opts)
    a.label('L_k2_attn')
    role_attn(a, opts)
    a.label('L_k2_end')
    a("s_endpgm")
    a.kernel_end(name, 256, 102)
    return [f"; @launch kernel=k2_kernel grid=({480 if 'nopro' in a.flags else 512},1,1) block=(256,1,1) lds=81920"]
```
